```python
import torch

def _softmax(x, axis=-1):
    return torch.softmax(x, dim=axis)
def _gelu(x):
    return torch.nn.functional.gelu(x, approximate="tanh")
def _silu(x):
    return torch.nn.functional.silu(x)
def _sigmoid(x):
    return torch.sigmoid(x)
def _layernorm(x, axis=-1, eps=1e-5):
    m = x.mean(dim=axis, keepdim=True)
    v = x.var(dim=axis, keepdim=True, unbiased=False)
    return (x - m) / torch.sqrt(v + eps)
def _scatter_add(tgt, idx, src, axis=0):
    return tgt.clone().index_add_(axis, idx, src)
def _segment_sum(src, seg, n):
    out = torch.zeros((n,) + src.shape[1:], dtype=src.dtype)
    return out.index_add_(0, seg, src)
def _pad(x, pw):
    flat = tuple(v for pair in reversed(pw) for v in pair)
    return torch.nn.functional.pad(x, flat)

kernel_name = 'standalone__kv_cache_quant_int4_int2_kv_with_per_channel_or_per_token_scales__prompt'

def setup_inputs():

    _w = (lambda a: (lambda t: t.to(torch.bfloat16) if t.is_floating_point() else t)(torch.as_tensor(a)))
    B = 1
    Sq = 2048
    Skv = 2048
    Hq = 32
    Hkv = 4
    Dh = 128
    bits = 4
    G = 128
    if G <= 0 or G >= Skv:
        G = max(1, Skv // 2)
    Skv = (Skv // G) * G
    ngk = Skv // G
    qmax = (1 << bits) - 1
    return {
        "q": _w((lambda *s: torch.randn(*s, dtype=torch.bfloat16) * 1.6)(B, Hq, Sq, Dh)),
        "qk": _w(torch.randint(0, qmax + 1, (B, Hkv, Skv, Dh)).to(torch.int32)),
        "qv": _w(torch.randint(0, qmax + 1, (B, Hkv, Skv, Dh)).to(torch.int32)),
        "k_scales": _w(torch.abs((lambda *s: torch.randn(*s, dtype=torch.bfloat16) * 1.6)(B, Hkv, ngk, Dh)) * 0.05 + 0.02),
        "k_zeros": _w((lambda *s: torch.randn(*s, dtype=torch.bfloat16) * 1.6)(B, Hkv, ngk, Dh) + float(qmax) / 2.0),
        "v_scales": _w(torch.abs((lambda *s: torch.randn(*s, dtype=torch.bfloat16) * 0.05)(B, Hkv, Skv, 1)) * 0.05 + 0.02),
        "v_zeros": _w((lambda *s: torch.randn(*s, dtype=torch.bfloat16) * 0.05)(B, Hkv, Skv, 1) + float(qmax) / 2.0),
    }

def reference(q, qk, qv, k_scales, k_zeros, v_scales, v_zeros):
    B, Hq, Sq, Dh = q.shape
    Hkv, Skv = qk.shape[1], qk.shape[2]
    ngk = k_scales.shape[2]
    G = Skv // ngk
    ks = (lambda x, n, axis: torch.repeat_interleave(x, n, dim=axis))(k_scales, G, axis=2)
    kz = (lambda x, n, axis: torch.repeat_interleave(x, n, dim=axis))(k_zeros, G, axis=2)
    k = ((lambda x, dt: x.to(dt))(qk, q.dtype) - kz) * ks
    v = ((lambda x, dt: x.to(dt))(qv, q.dtype) - v_zeros) * v_scales
    rep = Hq // Hkv
    if rep > 1:
        k = (lambda x, n, axis: torch.repeat_interleave(x, n, dim=axis))(k, rep, axis=1)
        v = (lambda x, n, axis: torch.repeat_interleave(x, n, dim=axis))(v, rep, axis=1)
    scale = float(Dh) ** -0.5
    logits = torch.einsum("bhqd,bhkd->bhqk", q, k) * scale
    p = _softmax(logits, axis=-1)
    o = torch.einsum("bhqk,bhkd->bhqd", p, v)
    return o
```

```python
import re


def regs_of(op):
    op = op.strip()
    if op.startswith('-'):
        op = op[1:]
    if op.startswith('abs(') or op.startswith('|'):
        op = op.replace('abs(', '').replace(')', '').replace('|', '')
    m = re.fullmatch(r'([vas])\[(\d+):(\d+)\]', op)
    if m:
        return [(m.group(1), i) for i in range(int(m.group(2)), int(m.group(3)) + 1)]
    m = re.fullmatch(r'([vas])(\d+)', op)
    if m:
        return [(m.group(1), int(m.group(2)))]
    if op == 'vcc':
        return [('s', 'vcc')]
    if op == 'm0':
        return [('s', 'm0')]
    if op == 'exec':
        return [('s', 'exec')]
    return []


TRANS = ('v_exp_f32', 'v_log_f32', 'v_rcp_f32', 'v_rsq_f32', 'v_sqrt_f32')


class I:
    def __init__(self, text):
        self.text = text
        t = text.split(';')[0].strip()
        self.is_label = t.endswith(':')
        self.is_dir = t.startswith('.') and not self.is_label
        self.empty = (t == '')
        self.op = t.split()[0] if t else ''
        rest = t[len(self.op):].strip()
        ops = [o.strip() for o in re.split(r',(?![^\[]*\])', rest)] if rest else []
        if ops:
            ops[-1] = ops[-1].split()[0] if ops[-1] else ops[-1]
        self.ops = ops
        self.w, self.r = [], []
        self.rc = []
        op = self.op
        self.kind = 'other'
        if self.is_label or self.is_dir or self.empty:
            self.kind = 'none'
        elif op.startswith('v_mfma'):
            self.kind = 'mfma'
            self.w = regs_of(ops[0])
            self.rab = regs_of(ops[1]) + regs_of(ops[2])
            self.rc = regs_of(ops[3])
            self.r = self.rab + self.rc
            self.passes = 8 if '32x32' in op else 4
        elif op.startswith('v_'):
            self.kind = 'valu'
            base = op.replace('_e32', '').replace('_e64', '')
            self.trans = base in TRANS
            if base.startswith('v_cmp'):
                self.w = regs_of(ops[0])
                self.r = sum((regs_of(o) for o in ops[1:]), [])
            elif base.startswith('v_permlane'):
                self.w = regs_of(ops[0]) + regs_of(ops[1])
                self.r = self.w
            else:
                self.w = regs_of(ops[0])
                self.r = sum((regs_of(o) for o in ops[1:]), [])
                if base.startswith('v_fmac') or base.startswith('v_dot2c') or base.endswith('_dpp'):
                    self.r += self.w
        elif op.startswith('ds_'):
            self.kind = 'ds'
            if op.startswith('ds_read') or 'rtn' in op or 'permute' in op:
                self.w = regs_of(ops[0])
                self.r = sum((regs_of(o) for o in ops[1:]), [])
            else:
                self.r = sum((regs_of(o) for o in ops), [])
        elif op.startswith('buffer_') or op.startswith('global_'):
            self.kind = 'vmem'
            self.lds = (' lds' in t) or ('_lds_' in op)
            if 'load' in op and not self.lds:
                self.w = regs_of(ops[0])
                self.r = sum((regs_of(o) for o in ops[1:]), [])
            else:
                self.r = sum((regs_of(o) for o in ops), [])
                if self.lds:
                    self.r.append(('s', 'm0'))
        elif op.startswith('s_'):
            self.kind = 'salu'
            if op in ('s_nop', 's_waitcnt', 's_barrier', 's_endpgm', 's_setprio', 's_sleep') or \
                    op.startswith('s_cbranch') or op == 's_branch' or op.startswith('s_cmp'):
                self.r = sum((regs_of(o) for o in ops), [])
            else:
                self.w = regs_of(ops[0])
                self.r = sum((regs_of(o) for o in ops[1:]), [])

    def states(self):
        if self.kind == 'none':
            return 0
        if self.op == 's_nop':
            return int(self.ops[0], 0) + 1
        return 1


def check_hazards(seq, name=''):
    probs = []
    ins = [i for i in seq if i.kind != 'none']
    n = len(ins)
    for a in range(n):
        p = ins[a]
        dist = 0
        for b in range(a + 1, min(n, a + 24)):
            c = ins[b]
            need = 0
            pw = set(p.w)
            if p.kind == 'mfma':
                P = p.passes
                big = {2: 5, 4: 8, 8: 12, 16: 20}[P]
                if c.kind == 'mfma':
                    if pw & set(c.rab):
                        need = big
                    if pw & set(c.rc) and not (c.rc == p.w and c.passes == P):
                        need = max(need, {2: 4, 4: 6, 8: 10, 16: 18}[P])
                    if pw & set(c.w) and not (c.rc == p.w and c.passes == P):
                        need = max(need, {2: 4, 4: 6, 8: 10, 16: 18}[P])
                elif c.kind in ('valu', 'ds', 'vmem'):
                    if pw & (set(c.r) | set(c.w)):
                        need = big
                    if c.kind == 'valu' and set(p.rc) & set(c.w):
                        need = max(need, {2: 1, 4: 3, 8: 7, 16: 15}[P])
            elif p.kind == 'valu':
                sw = {x for x in pw if x[0] == 's'}
                vw = pw - sw
                if c.kind == 'mfma' and vw & set(c.r):
                    need = 2
                if c.kind == 'valu':
                    if p.trans and not c.trans and vw & set(c.r):
                        need = max(need, 1)
                    if c.op.startswith('v_permlane') and vw & set(c.r):
                        need = max(need, 2)
                    if c.op.startswith('v_readfirstlane') or c.op.startswith('v_readlane'):
                        if vw & set(c.r):
                            need = max(need, 1)
                    if sw & set(c.r):
                        need = max(need, 2)
                    if 'dpp' in c.text or 'row_' in c.text or 'quad_perm' in c.text:
                        if vw & set(c.r):
                            need = max(need, 2)
                if c.kind == 'vmem' and sw & set(c.r):
                    need = max(need, 5)
                if p.trans and c.kind in ('ds', 'vmem') and vw & set(c.r):
                    need = max(need, 1)
            elif p.kind == 'salu':
                if ('s', 'm0') in pw and c.kind == 'vmem' and c.lds:
                    need = 1
            elif p.kind == 'vmem':
                if 'store' in p.op and ('x4' in p.op or 'x3' in p.op):
                    data = set(regs_of(p.ops[0])) if p.op.startswith('buffer') else set(regs_of(p.ops[1]))
                    if data & set(c.w):
                        need = 2
            if need > dist:
                probs.append(f'{name}: need {need} have {dist}: [{p.text.strip()}] -> [{c.text.strip()}]')
            dist += c.states()
            if dist >= 20:
                break
    return probs


class Prog:
    def __init__(self):
        self.l = []

    def __call__(self, text):
        for line in text.split('\n'):
            if line.strip():
                self.l.append(I(line.strip()))
        return self

    def extend(self, other):
        self.l.extend(other.l if isinstance(other, Prog) else other)

    def text(self):
        out = []
        for i in self.l:
            if i.is_label or i.is_dir:
                out.append(i.text)
            else:
                out.append('    ' + i.text)
        return '\n'.join(out) + '\n'
```

```python
import sys, math, struct
from asmlib import Prog, I, check_hazards

NAME = 'standalone__kv_cache_quant_int4_int2_kv_with_per_channel_or_per_token_scales__prompt'
opt = dict(stamp=0, thr=64, D=2, nodma=0, nods=0, novalu=0, nobar=0)
for a in sys.argv[2:]:
    k, v = a.split('=')
    opt[k] = int(v, 0)


def f32hex(x):
    return '0x%08x' % struct.unpack('<I', struct.pack('<f', x))[0]


CSCALE = math.log2(math.e) / math.sqrt(128.0)

HEADER = f"""; KIVI-style int4 KV-cache attention (prefill, GQA 32q/4kv, S=2048, D=128), gfx950.
; @launch kernel=prep_kernel grid=(256,1,1) block=(256,1,1) lds=0
; @launch kernel={NAME}_kernel grid=(256,1,1) block=(256,1,1) lds=135168
.amdgcn_target "amdgcn-amd-amdhsa--gfx950"
.text
"""


def srd(p, s, lo, hi, nbytes):
    p(f's_mov_b32 s{s}, s{lo}')
    p(f's_and_b32 s{s+1}, s{hi}, 0xffff')
    p(f's_mov_b32 s{s+2}, {nbytes:#x}')
    p(f's_mov_b32 s{s+3}, 0x20000')


def prep():
    p = Prog()
    p('.globl prep_kernel\n.p2align 8\n.type prep_kernel,@function\nprep_kernel:')
    p('s_cmp_ge_u32 s2, 256')
    p('s_cbranch_scc1 Lp_done')
    p('s_load_dwordx4 s[4:7], s[0:1], 8')
    p('s_load_dwordx4 s[8:11], s[0:1], 24')
    p('s_load_dwordx4 s[12:15], s[0:1], 40')
    p('s_load_dwordx2 s[16:17], s[0:1], 72')
    p('v_lshrrev_b32 v1, 6, v0')
    p('v_and_b32 v0, 63, v0')
    p('v_readfirstlane_b32 s3, v1')
    p('s_waitcnt lgkmcnt(0)')
    srd(p, 32, 16, 17, 4 << 20)
    p('s_cmp_ge_u32 s3, 2')
    p('s_cbranch_scc1 Lp_v')
    srd(p, 20, 4, 5, 4 << 20)
    srd(p, 24, 8, 9, 16384)
    srd(p, 28, 10, 11, 16384)
    p('v_and_b32 v1, 15, v0')
    p('v_lshrrev_b32 v2, 4, v0')
    p('v_lshlrev_b32 v3, 5, v1')
    p('v_lshl_add_u32 v3, v2, 9, v3')
    p('v_add_u32 v4, 4096, v3')
    p('s_lshl_b32 s18, s2, 14')
    p('s_lshl_b32 s19, s3, 13')
    p('s_add_u32 s18, s18, s19')
    p('v_lshlrev_b32 v5, 4, v1')
    p('s_lshr_b32 s19, s2, 2')
    p('s_lshl_b32 s19, s19, 8')
    p('buffer_load_dwordx4 v[8:11], v5, s[24:27], s19 offen')
    p('buffer_load_dwordx4 v[12:15], v5, s[28:31], s19 offen')
    for ps in range(4):
        for hf in range(2):
            r = 32 + ps * 8 + hf * 4
            p(f'buffer_load_dwordx4 v[{r}:{r+3}], v{3 + (ps >> 1)}, s[20:23], s18 offen offset:{(ps & 1) * 2048 + hf * 16}')
    p('v_lshlrev_b32 v6, 9, v1')
    p('v_lshl_add_u32 v6, v2, 4, v6')
    p('s_lshl_b32 s18, s2, 13')
    p('s_lshl_b32 s19, s3, 8')
    p('s_add_u32 s18, s18, s19')
    p(f's_mov_b32 s19, {f32hex(CSCALE)}')
    p('s_waitcnt vmcnt(8)')
    for j in range(8):
        if j & 1:
            p(f'v_and_b32 v{16+j}, 0xffff0000, v{8 + (j >> 1)}')
            p(f'v_and_b32 v{24+j}, 0xffff0000, v{12 + (j >> 1)}')
        else:
            p(f'v_lshlrev_b32 v{16+j}, 16, v{8 + (j >> 1)}')
            p(f'v_lshlrev_b32 v{24+j}, 16, v{12 + (j >> 1)}')
    for j in range(8):
        p(f'v_mul_f32 v{16+j}, s19, v{16+j}')
    for ps in range(4):
        p(f's_waitcnt vmcnt({6 - 2 * ps + ps})')
        r = 32 + ps * 8
        for j in range(8):
            p(f'v_cvt_f32_i32 v{r+j}, v{r+j}')
        for j in range(8):
            p(f'v_sub_f32 v{r+j}, v{r+j}, v{24+j}')
        for j in range(8):
            p(f'v_mul_f32 v{r+j}, v{r+j}, v{16+j}')
        for j in range(4):
            p(f'v_cvt_pk_bf16_f32 v{r+j}, v{r+2*j}, v{r+2*j+1}')
        p(f'buffer_store_dwordx4 v[{r}:{r+3}], v6, s[32:35], s18 offen offset:{ps * 64}')
    p('s_endpgm')
    p('Lp_v:')
    srd(p, 20, 6, 7, 4 << 20)
    srd(p, 24, 12, 13, 16384)
    srd(p, 28, 14, 15, 16384)
    p('s_sub_u32 s3, s3, 2')
    p('v_and_b32 v1, 31, v0')
    p('v_lshrrev_b32 v2, 5, v0')
    p('v_lshlrev_b32 v3, 4, v1')
    p('v_lshl_add_u32 v3, v2, 11, v3')
    p('v_add_u32 v4, 4096, v3')
    p('s_lshl_b32 s18, s2, 14')
    p('s_lshl_b32 s19, s3, 13')
    p('s_add_u32 s18, s18, s19')
    p('v_lshlrev_b32 v5, 3, v2')
    p('s_lshr_b32 s19, s18, 8')
    p('buffer_load_dwordx2 v[8:9], v5, s[24:27], s19 offen')
    p('buffer_load_dwordx2 v[10:11], v5, s[24:27], s19 offen offset:16')
    p('buffer_load_dwordx2 v[12:13], v5, s[28:31], s19 offen')
    p('buffer_load_dwordx2 v[14:15], v5, s[28:31], s19 offen offset:16')
    for j in range(8):
        r = 32 + 4 * j
        p(f'buffer_load_dwordx4 v[{r}:{r+3}], v{3 + (j >> 2)}, s[20:23], s18 offen offset:{(j & 3) * 512}')
    p('v_lshlrev_b32 v6, 4, v0')
    p('s_lshl_b32 s18, s2, 13')
    p('s_lshl_b32 s19, s3, 12')
    p('s_add_u32 s18, s18, s19')
    p('s_add_u32 s18, s18, 0x200000')
    p('s_waitcnt vmcnt(8)')
    for j in range(8):
        if j & 1:
            p(f'v_and_b32 v{16+j}, 0xffff0000, v{8 + (j >> 1)}')
            p(f'v_and_b32 v{24+j}, 0xffff0000, v{12 + (j >> 1)}')
        else:
            p(f'v_lshlrev_b32 v{16+j}, 16, v{8 + (j >> 1)}')
            p(f'v_lshlrev_b32 v{24+j}, 16, v{12 + (j >> 1)}')
    for j in range(8):
        p(f's_waitcnt vmcnt({7 - j})')
        r = 32 + 4 * j
        for db in range(4):
            p(f'v_cvt_f32_i32 v{r+db}, v{r+db}')
        for db in range(4):
            p(f'v_sub_f32 v{r+db}, v{r+db}, v{24+j}')
        for db in range(4):
            p(f'v_mul_f32 v{r+db}, v{r+db}, v{16+j}')
    for db in range(4):
        for jj in range(4):
            p(f'v_cvt_pk_bf16_f32 v{64 + 4*db + jj}, v{32 + 8*jj + db}, v{32 + 8*jj + 4 + db}')
        p(f'buffer_store_dwordx4 v[{64+4*db}:{64+4*db+3}], v6, s[32:35], s18 offen offset:{db * 1024}')
    p('Lp_done:')
    p('s_endpgm')
    return p


V_L16, V_L16B, V_DS = 1, 2, 3
V_L = [4, 5]
V_LS = [6, 7]
V_M = [8, 9]
V_T = 10
V_C = [32, 48]


def S(b, q):
    return 64 + 32 * b + 16 * q


def O(q, db):
    return 128 + 64 * q + 16 * db


def AQ(q, ks):
    return 32 * q + 4 * ks


def AK(f):
    return 64 + 4 * f


def AV(f):
    return 96 + 4 * f


def vr(r, n):
    return f'v[{r}:{r+n-1}]'


def ar(r, n):
    return f'a[{r}:{r+n-1}]'


def qk_mfmas(b, zero_c=False):
    out = []
    for ks in range(8):
        for q in range(2):
            c = vr(S(b, q), 16) if ks else ('0' if zero_c else vr(V_C[q], 16))
            out.append(f'v_mfma_f32_32x32x16_bf16 {vr(S(b,q),16)}, {ar(AK(ks),4)}, {ar(AQ(q,ks),4)}, {c}')
    return out


def pv_mfmas(b):
    out = []
    for s in range(2):
        for db in range(4):
            for q in range(2):
                out.append(f'v_mfma_f32_32x32x16_bf16 {vr(O(q,db),16)}, {vr(S(b,q)+8*s,4)}, {ar(AV(4*s+db),4)}, {vr(O(q,db),16)}')
    return out


def elem(b, e):
    blk, j = e >> 3, e & 7
    q, s = blk & 1, blk >> 1
    return q, S(b, q) + 8 * s + j


def sm_gap(b, w, snap):
    out = []
    if w < 32:
        q, r = elem(b, w)
        out.append(f'v_exp_f32 v{r}, v{r}')
    if w >= 1:
        e = w - 1
        q, r = elem(b, e)
        first = e in (0, 8)
        last = e in (23, 31)
        src = V_LS[q] if (snap == 'r' and first) else V_L[q]
        dst = V_LS[q] if (snap == 'w' and last) else V_L[q]
        out.append(f'v_add_f32 v{dst}, v{src}, v{r}')
    if w >= 2 and w % 2 == 0:
        q, r = elem(b, w - 2)
        j = ((w - 2) & 7) >> 1
        base = r - 2 * j
        out.append(f'v_cvt_pk_bf16_f32 v{base + j}, v{r}, v{r+1}')
    return out


def stamp(p, idx):
    if opt['stamp']:
        p(f's_memtime s[{40 + 2*idx}:{41 + 2*idx}]')


def main():
    p = Prog()
    kn = NAME + '_kernel'
    p(f'.globl {kn}\n.p2align 8\n.type {kn},@function\n{kn}:')
    p('s_cmp_ge_u32 s2, 256')
    p('s_cbranch_scc1 Lm_done')
    stamp(p, 0)
    if opt['stamp']:
        p('s_memrealtime s[60:61]')
    p('s_load_dwordx2 s[24:25], s[0:1], 0')
    p('s_load_dwordx4 s[28:31], s[0:1], 56')
    p('s_load_dwordx2 s[26:27], s[0:1], 72')
    p('v_lshrrev_b32 v10, 6, v0')
    p('v_and_b32 v0, 63, v0')
    p('v_readfirstlane_b32 s3, v10')
    p(f'v_lshlrev_b32 v{V_L16}, 4, v0')
    p(f'v_add_u32 v{V_L16B}, 4096, v{V_L16}')
    p('s_and_b32 s32, s2, 7')
    p('s_lshl_b32 s32, s32, 5')
    p('s_lshr_b32 s33, s2, 3')
    p('s_add_u32 s32, s32, s33')
    p('s_lshr_b32 s33, s32, 6')
    p('s_lshl_b32 s32, s32, 16')
    p('s_lshl_b32 s34, s3, 14')
    p('s_add_u32 s32, s32, s34')
    p('s_lshl_b32 s33, s33, 19')
    p('s_waitcnt lgkmcnt(0)')
    srd(p, 4, 24, 25, 16 << 20)
    srd(p, 12, 28, 29, 16 << 20)
    p('s_add_u32 s26, s26, s33')
    p('s_addc_u32 s27, s27, 0')
    srd(p, 20, 26, 27, 512 << 10)
    p('s_lshr_b32 s34, s3, 1')
    p('s_lshl_b32 s34, s34, 21')
    p('s_add_u32 s26, s26, s34')
    p('s_addc_u32 s27, s27, 0')
    srd(p, 8, 26, 27, 512 << 10)
    p('s_lshl_b32 s19, s3, 13')
    p(f'v_mov_b32 v{V_M[0]}, 0xff800000')
    p(f'v_mov_b32 v{V_M[1]}, 0xff800000')
    p('s_mov_b32 s35, 0')
    p('v_and_b32 v10, 31, v0')
    p('v_lshrrev_b32 v11, 5, v0')
    p('v_lshlrev_b32 v10, 8, v10')
    p('v_lshl_add_u32 v10, v11, 4, v10')
    p('s_add_u32 s34, s32, 8192')
    p('Lm_restart:')
    p('s_lshl_b32 s16, s3, 12')
    p('s_add_u32 m0, s16, 0x18000')
    p('s_nop 0')
    for k in range(4):
        p(f'buffer_load_dwordx4 v{V_L16}, s[20:23], s16 offen offset:{k*1024} lds')
    for q in range(2):
        for ks in range(8):
            p(f'buffer_load_dwordx4 {ar(AQ(q,ks),4)}, v10, s[4:7], s{32 if q == 0 else 34} offen offset:{ks*32}')
    p('s_xor_b32 s16, s19, 0x4000')
    for n in range(3):
        p(f's_add_u32 m0, s19, {n*32768}')
        p('s_nop 0')
        for k in range(4):
            p(f'buffer_load_dwordx4 v{V_L16}, s[8:11], s16 offen offset:{k*1024} lds')
        p(f's_add_u32 m0, s19, {n*32768 + 4096}')
        p('s_nop 0')
        for k in range(4):
            p(f'buffer_load_dwordx4 v{V_L16B}, s[8:11], s16 offen offset:{k*1024} lds')
        p('s_add_u32 s16, s16, 0x4000')
    for r in range(128, 256):
        p(f'v_mov_b32 v{r}, 0')
    p(f'v_mov_b32 v{V_LS[0]}, 0')
    p(f'v_mov_b32 v{V_LS[1]}, 0')
    p(f'v_add_u32 v{V_DS}, 0x18000, v{V_L16}')
    p('s_waitcnt vmcnt(40)')
    p('s_barrier')
    for f in range(8):
        p(f'ds_read_b128 {ar(AK(f),4)}, v{V_DS} offset:{f*1024}')
    p('s_waitcnt vmcnt(24) lgkmcnt(0)')
    stamp(p, 1)
    for i, m in enumerate(qk_mfmas(0, zero_c=True)):
        p(m)
        if i & 1 and i >= 3:
            f = (i - 3) >> 1
            p(f'ds_read_b128 {ar(AK(f),4)}, v{V_DS} offset:{8192 + f*1024}')
    p(f'ds_read_b128 {ar(AK(7),4)}, v{V_DS} offset:{8192 + 7*1024}')
    p(f'v_mov_b32 v{V_DS}, v{V_L16}')
    p('s_mov_b32 s17, 0')
    p('s_add_u32 s36, s19, 0x18000')
    p('s_mov_b32 s18, 0')
    p('s_nop 7')
    for q in range(2):
        for j in range(8):
            p(f'v_max3_f32 v{V_M[q]}, v{S(0,q)+2*j}, v{S(0,q)+2*j+1}, v{V_M[q]}')
    p(f'v_mov_b32 v12, v{V_M[0]}')
    p(f'v_mov_b32 v13, v{V_M[1]}')
    p('s_nop 1')
    p(f'v_permlane32_swap_b32 v12, v{V_M[0]}')
    p(f'v_permlane32_swap_b32 v13, v{V_M[1]}')
    p(f'v_max_f32 v{V_M[0]}, v12, v{V_M[0]}')
    p(f'v_max_f32 v{V_M[1]}, v13, v{V_M[1]}')
    for q in range(2):
        for j in range(16):
            p(f'v_sub_f32 v{S(0,q)+j}, v{S(0,q)+j}, v{V_M[q]}')
    for q in range(2):
        for j in range(16):
            p(f'v_sub_f32 v{V_C[q]+j}, 0, v{V_M[q]}')
    D = opt['D']
    for w in range(0, 16 - D):
        for x in sm_gap(0, w, 'r'):
            p(x)
    stamp(p, 2)
    pre_end = len(p.l)

    loop = Prog()
    phases = [('qk', 1), ('pv', 0), ('qk', 0), ('pv', 1)]
    dma_k = 0
    for ph, (kind, b) in enumerate(phases):
        mf = qk_mfmas(b) if kind == 'qk' else pv_mfmas(b)
        for g in range(16):
            loop(mf[g])
            fill = []
            if kind == 'qk':
                sb = 1 - b
                fill += sm_gap(sb, 16 - D + g, 'r' if sb == 0 else 'w')
            else:
                if g <= D:
                    fill += sm_gap(b, 32 - D + g, 'r' if b == 0 else 'w')
                if g >= D:
                    x = sm_gap(1 - b, g - D, 'r' if b == 1 else 'w')
                    fill = x[:1] + fill + x[1:]
            if opt['novalu']:
                fill = []
            if g < 8 and not opt['nods']:
                if kind == 'qk':
                    off = 16384 + (ph >> 1) * 8192 + g * 1024
                    fill.insert(1, f'ds_read_b128 {ar(AV(g),4)}, v{V_DS} offset:{off}')
                else:
                    off = (ph >> 1) * 8192 + g * 1024
                    fill.insert(1, f'ds_read_b128 {ar(AK(g),4)}, v{V_DS} offset:{off}')
            if g == 8 and ph == 0:
                fill.append('s_mov_b32 m0, s36')
            if g == 8 and ph == 2:
                fill.append('s_add_u32 m0, s36, 4096')
            if g in (9, 13) and not opt['nodma']:
                fill.append(f'buffer_load_dwordx4 v{V_L16 if dma_k < 4 else V_L16B}, s[8:11], s16 offen offset:{(dma_k & 3)*1024} lds')
                dma_k += 1
            if ph == 3:
                if g == 8:
                    fill.append('s_add_u32 s36, s17, s19')
                if g == 10:
                    fill.append('s_add_u32 s17, s17, 0x8000')
                if g == 11:
                    fill.append('s_and_b32 s17, s17, 0x1ffff')
                    fill.append('s_add_u32 s18, s18, 1')
                if g == 12:
                    fill.append(f'v_add_u32 v{V_DS}, s17, v{V_L16}')
                if g == 14:
                    fill.append('s_add_u32 s16, s16, 0x4000')
                if g == 15:
                    fill.append('s_cmp_lt_u32 s18, 32')
                    fill.append('s_cbranch_scc1 Lm_loop')
            elif g == 15:
                fill.append('s_waitcnt lgkmcnt(0)')
            for x in fill:
                loop(x)
    head = Prog()
    head('.p2align 6')
    head('Lm_loop:')
    head('s_waitcnt vmcnt(16) lgkmcnt(0)')
    if not opt['nobar']:
        head('s_barrier')
    p.extend(head)
    p.extend(loop)
    loop_end = len(p.l)

    stamp(p, 3)
    p(f'v_mov_b32 v12, v{V_LS[0]}')
    p(f'v_mov_b32 v13, v{V_LS[1]}')
    p('s_lshl_b32 s16, s3, 8')
    p('s_add_u32 s16, s16, 0x20000')
    p(f'v_permlane32_swap_b32 v12, v{V_LS[0]}')
    p(f'v_permlane32_swap_b32 v13, v{V_LS[1]}')
    p(f'v_add_f32 v12, v12, v{V_LS[0]}')
    p(f'v_add_f32 v13, v13, v{V_LS[1]}')
    p(f's_mov_b32 s17, {f32hex(2.0**opt["thr"])}')
    p('v_cmp_ngt_f32 vcc, s17, v12')
    p('v_cmp_ngt_f32 s[38:39], s17, v13')
    p('s_or_b64 vcc, vcc, s[38:39]')
    p('s_cmp_lg_u64 vcc, 0')
    p('s_cselect_b32 s17, 1, 0')
    p('v_mov_b32 v14, s17')
    p('s_lshl_b32 s18, s3, 2')
    p('s_add_u32 s18, s18, 0x20400')
    p('v_mov_b32 v15, s18')
    p('ds_write_b32 v15, v14')
    p('v_rcp_f32 v12, v12')
    p('v_rcp_f32 v13, v13')
    p('v_cmp_gt_u32 vcc, 32, v0')
    p('v_lshl_add_u32 v15, v0, 2, s16')
    p('s_nop 0')
    p('v_cndmask_b32 v12, v13, v12, vcc')
    p('ds_write_b32 v15, v12')
    p('v_lshrrev_b32 v11, 5, v0')
    p('v_lshl_add_u32 v15, v11, 4, s16')
    p('v_mov_b32 v14, 0x20400')
    p('s_waitcnt lgkmcnt(0)')
    p('s_barrier')
    p('ds_read_b128 v[16:19], v14')
    for q in range(2):
        for a in range(4):
            p(f'ds_read_b128 {vr(V_C[q]+4*a,4)}, v15 offset:{q*128 + a*32}')
    p('v_and_b32 v12, 31, v0')
    p('v_lshlrev_b32 v12, 3, v12')
    p('v_lshl_add_u32 v12, v11, 10, v12')
    p('s_waitcnt lgkmcnt(8)')
    p('v_or_b32 v16, v16, v17')
    p('v_or3_b32 v16, v16, v18, v19')
    p('s_nop 0')
    p('v_readfirstlane_b32 s17, v16')
    p('s_cmp_gt_u32 s17, s35')
    p('s_cbranch_scc1 Lm_fallback')
    p('s_waitcnt lgkmcnt(0)')
    t = 0
    for q in range(2):
        for i in range(0, 16, 2):
            if (i & 7) == 0:
                p(f's_add_u32 s16, s32, {q*8192 + (i >> 3)*4096}')
            for db in range(4):
                r = O(q, db) + i
                p(f'v_pk_mul_f32 {vr(r,2)}, {vr(r,2)}, {vr(V_C[q]+i,2)}')
            for ii in (i, i + 1):
                d = 64 + 2 * (t % 16)
                t += 1
                p(f'v_cvt_pk_bf16_f32 v{d}, v{O(q,0)+ii}, v{O(q,1)+ii}')
                p(f'v_cvt_pk_bf16_f32 v{d+1}, v{O(q,2)+ii}, v{O(q,3)+ii}')
                p(f'buffer_store_dwordx2 {vr(d,2)}, v12, s[12:15], s16 offen offset:{((ii >> 2) & 1)*2048 + (ii & 3)*256}')
    if opt['stamp']:
        stamp(p, 4)
        p('s_waitcnt vmcnt(0)')
        stamp(p, 5)
        p('s_memrealtime s[62:63]')
        p('s_waitcnt lgkmcnt(0)')
        p(f's_cmp_lg_u32 s2, {opt["stamp"] - 1}')
        p('s_cbranch_scc1 Lm_done')
        p('s_cmp_lg_u32 s3, 0')
        p('s_cbranch_scc1 Lm_done')
        srd(p, 4, 30, 31, 256)
        p('v_mov_b32 v10, 0')
        for k in range(1, 6):
            p(f's_sub_u32 s{40+2*k}, s{40+2*k}, s40')
            p(f'v_mov_b32 v11, s{40+2*k}')
            p(f'buffer_store_dword v11, v10, s[4:7], 0 offen offset:{4*k}')
        p('s_sub_u32 s62, s62, s60')
        p('v_mov_b32 v11, s62')
        p('buffer_store_dword v11, v10, s[4:7], 0 offen offset:0')
    p('Lm_done:')
    p('s_endpgm')
    epi_end = len(p.l)

    p('Lm_fallback:')
    p('s_mov_b32 s35, 1')
    p('s_waitcnt vmcnt(0) lgkmcnt(0)')
    p('s_lshl_b32 s16, s3, 11')
    p('s_mov_b32 m0, s16')
    p('s_mov_b32 s18, 0')
    p('Lm_fb_loop:')
    p('s_barrier')
    for k in range(2):
        p(f'buffer_load_dwordx4 v{V_L16}, s[20:23], s16 offen offset:{k*1024} lds')
    p('s_waitcnt vmcnt(0)')
    p('s_barrier')
    for f in range(8):
        p(f'ds_read_b128 {ar(AK(f),4)}, v{V_L16} offset:{f*1024}')
    p('s_waitcnt lgkmcnt(0)')
    for m in qk_mfmas(0, zero_c=True):
        p(m)
    p('s_nop 15')
    for q in range(2):
        for j in range(8):
            p(f'v_max3_f32 v{V_M[q]}, v{S(0,q)+2*j}, v{S(0,q)+2*j+1}, v{V_M[q]}')
    p('s_add_u32 s16, s16, 8192')
    p('s_add_u32 s18, s18, 1')
    p('s_cmp_lt_u32 s18, 64')
    p('s_cbranch_scc1 Lm_fb_loop')
    p('s_barrier')
    p('s_branch Lm_restart')

    seq = p.l[:loop_end] + p.l[pre_end:epi_end]
    probs = check_hazards(seq, 'main') + check_hazards(p.l[epi_end:], 'fb')
    for x in probs:
        print('HAZARD', x, file=sys.stderr)
    return p


def kd(name, nv, acc, ns):
    return f"""
.amdhsa_kernel {name}
  .amdhsa_next_free_vgpr {nv}
  .amdhsa_next_free_sgpr {ns}
  .amdhsa_accum_offset {acc}
  .amdhsa_group_segment_fixed_size 0
  .amdhsa_kernarg_size 80
  .amdhsa_user_sgpr_count 2
  .amdhsa_user_sgpr_kernarg_segment_ptr 1
  .amdhsa_system_sgpr_workgroup_id_x 1
  .amdhsa_float_denorm_mode_32 3
.end_amdhsa_kernel
"""


if __name__ == '__main__':
    pp = prep()
    for x in check_hazards(pp.l, 'prep'):
        print('HAZARD', x, file=sys.stderr)
    pm = main()
    txt = HEADER + pp.text() + pm.text() + '.section .rodata,"a"\n.p2align 6' + kd('prep_kernel', 80, 80, 40) + '.p2align 6' + kd(NAME + '_kernel', 384, 256, 72)
    open(sys.argv[1], 'w').write(txt)
```

```python
import sys, math, struct
from asmlib import Prog, I, check_hazards

NAME = 'standalone__kv_cache_quant_int4_int2_kv_with_per_channel_or_per_token_scales__prompt'
opt = dict(stamp=0, thr=64, nodma=0, nods=0, novalu=0, nobar=0, snake=1, dd=1, traj=0)
for a in sys.argv[2:]:
    k, v = a.split('=')
    opt[k] = int(v, 0)


def f32hex(x):
    return '0x%08x' % struct.unpack('<I', struct.pack('<f', x))[0]


CSCALE = math.log2(math.e) / math.sqrt(128.0)
MF = 'v_mfma_f32_16x16x32_bf16'

HEADER = f"""; KIVI-style int4 KV-cache attention (prefill, GQA 32q/4kv, S=2048, D=128), gfx950.
; @launch kernel=prep_kernel grid=(256,1,1) block=(256,1,1) lds=0
; @launch kernel={NAME}_kernel grid=(256,1,1) block=(256,1,1) lds=135168
.amdgcn_target "amdgcn-amd-amdhsa--gfx950"
.text
"""


def srd(p, s, lo, hi, nbytes):
    p(f's_mov_b32 s{s}, s{lo}')
    p(f's_and_b32 s{s+1}, s{hi}, 0xffff')
    p(f's_mov_b32 s{s+2}, {nbytes:#x}')
    p(f's_mov_b32 s{s+3}, 0x20000')


def unpack8(p, dst, src):
    for j in range(8):
        if j & 1:
            p(f'v_and_b32 v{dst+j}, 0xffff0000, v{src + (j >> 1)}')
        else:
            p(f'v_lshlrev_b32 v{dst+j}, 16, v{src + (j >> 1)}')


def prep():
    p = Prog()
    p('.globl prep_kernel\n.p2align 8\n.type prep_kernel,@function\nprep_kernel:')
    p('s_cmp_ge_u32 s2, 256')
    p('s_cbranch_scc1 Lp_done')
    p('s_load_dwordx4 s[4:7], s[0:1], 8')
    p('s_load_dwordx4 s[8:11], s[0:1], 24')
    p('s_load_dwordx4 s[12:15], s[0:1], 40')
    p('s_load_dwordx2 s[16:17], s[0:1], 72')
    p('v_lshrrev_b32 v1, 6, v0')
    p('v_and_b32 v0, 63, v0')
    p('v_readfirstlane_b32 s3, v1')
    p('s_lshr_b32 s36, s2, 1')
    p('s_lshl_b32 s36, s36, 15')
    p('s_and_b32 s37, s2, 1')
    p('s_waitcnt lgkmcnt(0)')
    srd(p, 32, 16, 17, 4 << 20)
    p('s_cmp_ge_u32 s3, 2')
    p('s_cbranch_scc1 Lp_v')
    srd(p, 20, 4, 5, 4 << 20)
    srd(p, 24, 8, 9, 16384)
    srd(p, 28, 10, 11, 16384)
    p('v_and_b32 v1, 7, v0')
    p('v_lshrrev_b32 v2, 3, v0')
    p('v_lshlrev_b32 v3, 5, v2')
    p('v_lshl_add_u32 v3, v1, 9, v3')
    p('v_add_u32 v4, 4096, v3')
    p('s_lshl_b32 s18, s2, 14')
    p('s_lshl_b32 s19, s3, 13')
    p('s_add_u32 s18, s18, s19')
    p('v_lshlrev_b32 v5, 4, v2')
    p('s_lshr_b32 s19, s2, 2')
    p('s_lshl_b32 s19, s19, 8')
    for ch in range(2):
        p(f'buffer_load_dwordx4 v[{8+4*ch}:{11+4*ch}], v5, s[24:27], s19 offen offset:{ch*128}')
        p(f'buffer_load_dwordx4 v[{16+4*ch}:{19+4*ch}], v5, s[28:31], s19 offen offset:{ch*128}')
    for ps in range(4):
        th, ch = ps >> 1, ps & 1
        for hf in range(2):
            r = 56 + ps * 8 + hf * 4
            p(f'buffer_load_dwordx4 v[{r}:{r+3}], v{3 + th}, s[20:23], s18 offen offset:{ch * 256 + hf * 16}')
    p('v_lshlrev_b32 v6, 8, v2')
    p('v_lshl_add_u32 v6, v1, 4, v6')
    p('s_lshl_b32 s18, s37, 1')
    p('s_add_u32 s18, s18, s3')
    p('s_lshl_b32 s18, s18, 12')
    p('s_add_u32 s18, s18, s36')
    p(f's_mov_b32 s19, {f32hex(CSCALE)}')
    p('s_waitcnt vmcnt(8)')
    for ch in range(2):
        unpack8(p, 24 + 8 * ch, 8 + 4 * ch)
        unpack8(p, 40 + 8 * ch, 16 + 4 * ch)
    for j in range(16):
        p(f'v_mul_f32 v{24+j}, s19, v{24+j}')
    for ps in range(4):
        th, ch = ps >> 1, ps & 1
        p(f's_waitcnt vmcnt({6 - 2 * ps + ps})')
        r = 56 + ps * 8
        for j in range(8):
            p(f'v_cvt_f32_i32 v{r+j}, v{r+j}')
        for j in range(8):
            p(f'v_sub_f32 v{r+j}, v{r+j}, v{40+8*ch+j}')
        for j in range(8):
            p(f'v_mul_f32 v{r+j}, v{r+j}, v{24+8*ch+j}')
        for j in range(4):
            p(f'v_cvt_pk_bf16_f32 v{r+j}, v{r+2*j}, v{r+2*j+1}')
        p(f'buffer_store_dwordx4 v[{r}:{r+3}], v6, s[32:35], s18 offen offset:{ch * 2048 + th * 128}')
    p('s_endpgm')
    p('Lp_v:')
    srd(p, 20, 6, 7, 4 << 20)
    srd(p, 24, 12, 13, 16384)
    srd(p, 28, 14, 15, 16384)
    p('s_sub_u32 s3, s3, 2')
    p('v_and_b32 v1, 15, v0')
    p('v_lshrrev_b32 v2, 4, v0')
    p('v_lshlrev_b32 v3, 5, v1')
    p('v_lshl_add_u32 v3, v2, 11, v3')
    p('v_add_u32 v4, 8192, v3')
    p('s_lshl_b32 s18, s2, 14')
    p('s_lshl_b32 s19, s3, 4')
    p('s_add_u32 s18, s18, s19')
    p('v_lshlrev_b32 v5, 3, v2')
    p('s_lshl_b32 s19, s2, 6')
    p('buffer_load_dwordx2 v[8:9], v5, s[24:27], s19 offen')
    p('buffer_load_dwordx2 v[10:11], v5, s[24:27], s19 offen offset:32')
    p('buffer_load_dwordx2 v[12:13], v5, s[28:31], s19 offen')
    p('buffer_load_dwordx2 v[14:15], v5, s[28:31], s19 offen offset:32')
    for j in range(8):
        r = 32 + 4 * j
        p(f'buffer_load_dwordx4 v[{r}:{r+3}], v{3 + (j >> 2)}, s[20:23], s18 offen offset:{(j & 3) * 512}')
    p('v_lshlrev_b32 v6, 4, v0')
    p('v_add_u32 v7, 4096, v6')
    p('s_lshl_b32 s18, s3, 13')
    p('s_lshl_b32 s19, s37, 10')
    p('s_add_u32 s18, s18, s19')
    p('s_add_u32 s18, s18, s36')
    p('s_add_u32 s18, s18, 16384')
    p('s_waitcnt vmcnt(8)')
    unpack8(p, 16, 8)
    unpack8(p, 24, 12)
    for j in range(8):
        p(f's_waitcnt vmcnt({7 - j})')
        r = 32 + 4 * j
        for db in range(4):
            p(f'v_cvt_f32_i32 v{r+db}, v{r+db}')
        for db in range(4):
            p(f'v_sub_f32 v{r+db}, v{r+db}, v{24+j}')
        for db in range(4):
            p(f'v_mul_f32 v{r+db}, v{r+db}, v{16+j}')
    for db in range(4):
        for jj in range(4):
            p(f'v_cvt_pk_bf16_f32 v{64 + 4*db + jj}, v{32 + 8*jj + db}, v{32 + 8*jj + 4 + db}')
        p(f'buffer_store_dwordx4 v[{64+4*db}:{64+4*db+3}], v{6 + (db >> 1)}, s[32:35], s18 offen offset:{(db & 1) * 2048}')
    p('Lp_done:')
    p('s_endpgm')
    return p


V_L16, V_L16B, V_DS, V_QOFF = 1, 2, 3, 4
V_M = 8
V_T = 12
V_ONE = 28
V_C = 32
V_L = 48


def S(b):
    return 64 + 16 * b


def O(q, db):
    return 128 + 32 * q + 4 * db


def AQ(q, ks):
    return 16 * q + 4 * ks


def AK(tb, ks):
    return 64 + 16 * tb + 4 * ks


def AV(x):
    return 128 + 4 * x


def vr(r, n=4):
    return f'v[{r}:{r+n-1}]'


def ar(r, n=4):
    return f'a[{r}:{r+n-1}]'


def qk_order():
    o = []
    for tb in range(4):
        kss = range(4) if (tb % 2 == 0 or not opt['snake']) else range(3, -1, -1)
        o += [(tb, ks) for ks in kss]
    return o


def qk_mfmas(q):
    out = []
    for x, (tb, ks) in enumerate(qk_order()):
        d = vr(S(q & 1) + 4 * tb)
        c = d if x % 4 else vr(V_C + 4 * q)
        out.append(f'{MF} {d}, {ar(AK(tb,ks))}, {ar(AQ(q,ks))}, {c}')
    return out


def pv_mfmas(q):
    out = []
    for x in range(16):
        db, s = x >> 1, x & 1
        out.append(f'{MF} {vr(O(q,db))}, {vr(S(q & 1)+8*s)}, {ar(AV(x))}, {vr(O(q,db))}')
    for s in range(2):
        out.append(f'{MF} {vr(V_L+4*q)}, {vr(S(q & 1)+8*s)}, {vr(V_ONE)}, {vr(V_L+4*q)}')
    return out


def f_exp(b, e):
    return f'v_exp_f32 v{S(b)+e}, v{S(b)+e}'


def f_cvt(b, jj):
    base = S(b) + 8 * (jj >> 2)
    j = jj & 3
    return f'v_cvt_pk_bf16_f32 v{base+j}, v{base+2*j}, v{base+2*j+1}'


def sm_fill(q, G):
    b = q & 1
    if G % 2 == 0 and G <= 30:
        return [f_exp(b, (G - 8) // 2)] if G >= 8 else [f_exp(1 - b, 12 + G // 2)]
    if G % 4 == 3:
        return [f_cvt(b, (G - 11) // 4)] if G >= 11 else [f_cvt(1 - b, 6 + G // 4)]
    return []


def stamp(p, idx):
    if opt['stamp']:
        p(f's_memtime s[{40 + 2*idx}:{41 + 2*idx}]')


def rowmax_first_tile(p):
    for q in range(4):
        p(f'v_max3_f32 v{V_M+q}, v{64+4*q}, v{65+4*q}, v{V_M+q}')
    for q in range(4):
        p(f'v_max3_f32 v{V_M+q}, v{66+4*q}, v{67+4*q}, v{V_M+q}')


def main():
    p = Prog()
    kn = NAME + '_kernel'
    p(f'.globl {kn}\n.p2align 8\n.type {kn},@function\n{kn}:')
    p('s_cmp_ge_u32 s2, 256')
    p('s_cbranch_scc1 Lm_done')
    stamp(p, 0)
    if opt['stamp']:
        p('s_memrealtime s[60:61]')
    p('s_load_dwordx2 s[24:25], s[0:1], 0')
    p('s_load_dwordx4 s[28:31], s[0:1], 56')
    p('s_load_dwordx2 s[26:27], s[0:1], 72')
    p('v_lshrrev_b32 v12, 6, v0')
    p('v_and_b32 v0, 63, v0')
    p('v_readfirstlane_b32 s3, v12')
    p(f'v_lshlrev_b32 v{V_L16}, 4, v0')
    p(f'v_add_u32 v{V_L16B}, 4096, v{V_L16}')
    p('s_and_b32 s32, s2, 7')
    p('s_lshl_b32 s32, s32, 5')
    p('s_lshr_b32 s33, s2, 3')
    p('s_add_u32 s32, s32, s33')
    p('s_lshr_b32 s33, s32, 6')
    p('s_lshl_b32 s32, s32, 16')
    p('s_lshl_b32 s34, s3, 14')
    p('s_add_u32 s32, s32, s34')
    p('s_lshl_b32 s33, s33, 20')
    p('s_waitcnt lgkmcnt(0)')
    srd(p, 4, 24, 25, 16 << 20)
    srd(p, 12, 28, 29, 16 << 20)
    if opt['traj']:
        p('s_add_u32 s64, s26, 0x800000')
        p('s_addc_u32 s65, s27, 0')
        srd(p, 64, 64, 65, 1 << 20)
        p('s_lshl_b32 s68, s2, 2')
        p('s_add_u32 s68, s68, s3')
        p('s_lshl_b32 s68, s68, 9')
    p('s_add_u32 s26, s26, s33')
    p('s_addc_u32 s27, s27, 0')
    srd(p, 8, 26, 27, 1 << 20)
    p('s_lshl_b32 s19, s3, 13')
    for q in range(4):
        p(f'v_mov_b32 v{V_M+q}, 0xff800000')
    p('s_mov_b32 s35, 0')
    p('v_and_b32 v12, 15, v0')
    p('v_lshrrev_b32 v13, 4, v0')
    p('v_lshlrev_b32 v12, 8, v12')
    p(f'v_lshl_add_u32 v{V_QOFF}, v13, 4, v12')
    p('Lm_restart:')
    p('s_mov_b32 s16, s19')

    def dma_stage(n):
        p(f's_add_u32 m0, s19, {n*32768}')
        p('s_nop 0')
        for k in range(4):
            p(f'buffer_load_dwordx4 v{V_L16}, s[8:11], s16 offen offset:{k*1024} lds')
        p(f's_add_u32 m0, s19, {n*32768 + 4096}')
        p('s_nop 0')
        for k in range(4):
            p(f'buffer_load_dwordx4 v{V_L16B}, s[8:11], s16 offen offset:{k*1024} lds')
        p('s_add_u32 s16, s16, 0x8000')
    dma_stage(0)
    for q in range(4):
        p(f's_add_u32 s34, s32, {q*4096}')
        for ks in range(4):
            p(f'buffer_load_dwordx4 {ar(AQ(q,ks))}, v{V_QOFF}, s[4:7], s34 offen offset:{ks*64}')
    dma_stage(1)
    dma_stage(2)
    for r in range(128, 256):
        p(f'v_mov_b32 v{r}, 0')
    for r in range(16):
        p(f'v_mov_b32 v{V_L+r}, 0')
    for r in range(64):
        p(f'v_accvgpr_write_b32 a{128+r}, 0')
    for r in range(4):
        p(f'v_mov_b32 v{V_ONE+r}, 0x3f803f80')
    for r in range(12):
        p(f'v_mov_b32 v{S(1)+r}, 0')
    for r in range(12, 16):
        p(f'v_mov_b32 v{S(1)+r}, 0xff800000')
    p(f'v_mov_b32 v{V_DS}, v{V_L16}')
    p('s_waitcnt vmcnt(32)')
    p('s_barrier')
    for tb, ks in qk_order():
        p(f'ds_read_b128 {ar(AK(tb,ks))}, v{V_DS} offset:{(tb*4+ks)*1024}')
    p('s_mov_b32 s17, 0')
    p('s_add_u32 s36, s19, 0x18000')
    p('s_mov_b32 s18, 0')
    p('s_waitcnt vmcnt(16) lgkmcnt(12)')
    stamp(p, 1)
    for q in range(4):
        for ks in range(4):
            d = vr(64 + 4 * q)
            p(f'{MF} {d}, {ar(AK(0,ks))}, {ar(AQ(q,ks))}, {d if ks else 0}')
    p('s_nop 4')
    rowmax_first_tile(p)
    for sw in ('v_permlane32_swap_b32', 'v_permlane16_swap_b32'):
        for q in range(4):
            p(f'v_mov_b32 v{V_T+q}, v{V_M+q}')
        for q in range(4):
            p(f'{sw} v{V_T+q}, v{V_M+q}')
        for q in range(4):
            p(f'v_max_f32 v{V_M+q}, v{V_T+q}, v{V_M+q}')
    for q in range(4):
        for i in range(4):
            p(f'v_sub_f32 v{V_C+4*q+i}, 0, v{V_M+q}')
    stamp(p, 2)
    p('s_waitcnt lgkmcnt(0)')
    pre_end = len(p.l)

    loop = Prog()
    dma_k = 0
    order = qk_order()
    for q in range(4):
        mf = qk_mfmas(q) + pv_mfmas((q - 1) & 3)
        for G in range(34):
            pre = []
            sh = []
            fill = [] if opt['novalu'] else sm_fill(q, G)
            rd = []
            if opt['dd']:
                if q == 0 and G >= 17 and G % 4 == 1:
                    rd = [('v', 2 * ((G - 17) // 4) + k) for k in range(2)]
                if q == 1 and G in (1, 5, 9):
                    rd = [('v', 10 + 2 * ((G - 1) // 4) + k) for k in range(2)]
                if q == 3 and G % 4 == 1 and G <= 29:
                    rd = [('k', 2 * ((G - 1) // 4) + k) for k in range(2)]
            else:
                if q == 0 and G >= 17 and G % 2 == 1:
                    rd = [('v', (G - 17) // 2)]
                if q == 1 and G % 2 == 1 and G <= 13:
                    rd = [('v', 9 + (G - 1) // 2)]
                if q == 3 and G % 2 == 1 and G <= 31:
                    rd = [('k', (G - 1) // 2)]
            if not opt['nods']:
                for kind, r in rd:
                    if kind == 'v':
                        sh.append(f'ds_read_b128 {ar(AV(r))}, v{V_DS} offset:{16384 + r*1024}')
                    else:
                        tb, ks = order[r]
                        sh.append(f'ds_read_b128 {ar(AK(tb,ks))}, v{V_DS} offset:{(tb*4+ks)*1024}')
            if q == 0 and G == 7:
                sh.append('s_waitcnt lgkmcnt(0)')
            if q == 1 and G == 15:
                sh.append('s_waitcnt lgkmcnt(6)')
            if q == 1 and G == 25:
                sh.append('s_waitcnt lgkmcnt(0)')
            if q == 3 and G == 32:
                sh.append('s_waitcnt lgkmcnt(8)')
            if q == 0 and G == 4:
                sh.append('s_mov_b32 m0, s36')
            if q == 2 and G == 4:
                sh.append('s_add_u32 m0, s36, 4096')
            if ((q == 0 and G in (5, 13)) or (q == 1 and G in (21, 29)) or (q == 2 and G in (5, 13, 21, 29))):
                if not opt['nodma']:
                    sh.append(f'buffer_load_dwordx4 v{V_L16 if dma_k < 4 else V_L16B}, s[8:11], s16 offen offset:{(dma_k & 3)*1024} lds')
                dma_k += 1
            if q == 2:
                if G == 6:
                    sh.append('s_add_u32 s36, s17, s19')
                if G == 8:
                    sh.append('s_add_u32 s17, s17, 0x8000')
                if G == 10:
                    sh.append('s_and_b32 s17, s17, 0x1ffff')
                if G == 17:
                    fill.append(f'v_add_u32 v{V_DS}, s17, v{V_L16}')
                if G == 30:
                    sh.append('s_add_u32 s16, s16, 0x8000')
                if G == 12:
                    sh.append('s_add_u32 s18, s18, 1')
                if G == 32:
                    sh.append('s_waitcnt vmcnt(16)')
                if G == 33 and not opt['nobar']:
                    sh.append('s_barrier')
                if opt['traj']:
                    if G == 0:
                        sh.append('s_memtime s[70:71]')
                    if G == 2:
                        sh.append('s_memrealtime s[72:73]')
                    if G == 22:
                        sh.append('s_waitcnt lgkmcnt(0)')
                    if G == 25:
                        fill += ['v_mov_b32 v12, s70', 'v_mov_b32 v13, s72']
                    if G == 32:
                        fill += ['v_mov_b32 v14, s68']
                    if G == 33:
                        fill += ['buffer_store_dwordx2 v[12:13], v14, s[64:67], 0 offen', 's_add_u32 s68, s68, 8']
            if q == 3 and G == 30:
                sh.append('s_cmp_lt_u32 s18, 32')
            if q == 3 and G == 33:
                sh.append('s_cbranch_scc1 Lm_loop')
            loop(mf[G])
            for x in sh + fill:
                loop(x)
    head = Prog()
    head('.p2align 6')
    head('Lm_loop:')
    p.extend(head)
    p.extend(loop)
    loop_end = len(p.l)

    stamp(p, 3)
    for e in range(12, 16):
        p(f_exp(1, e))
    p('v_and_b32 v12, 15, v0')
    p(f_cvt(1, 6))
    p(f_cvt(1, 7))
    p('v_lshrrev_b32 v13, 4, v0')
    p('v_lshlrev_b32 v12, 4, v12')
    tailm = pv_mfmas(3)
    tailm = tailm[16:] + tailm[:16]
    p('v_lshl_add_u32 v5, v13, 10, v12')
    p(f's_mov_b32 s17, {f32hex(2.0**opt["thr"])}')
    p('s_mov_b64 s[38:39], 0')
    ep = []

    def norm(q, pk):
        o = []
        for i in range(4):
            o.append(f'v_cmp_ngt_f32 vcc, s17, v{V_L+4*q+i}')
            o.append(f'v_rcp_f32 v{V_L+4*q+i}, v{V_L+4*q+i}')
            o.append('s_or_b64 s[38:39], s[38:39], vcc')
        o.append(f's_add_u32 s16, s32, {q*4096}')
        for i in range(4):
            if pk:
                if i % 2 == 0:
                    for db in range(8):
                        r = O(q, db) + i
                        o.append(f'v_pk_mul_f32 {vr(r,2)}, {vr(r,2)}, {vr(V_L+4*q+i,2)}')
            else:
                for db in range(8):
                    r = O(q, db) + i
                    o.append(f'v_mul_f32 v{r}, v{r}, v{V_L+4*q+i}')
            d = 96 + 4 * ((4 * q + i) % 8)
            for jj in range(4):
                o.append(f'v_cvt_pk_bf16_f32 v{d+jj}, v{O(q,2*jj)+i}, v{O(q,2*jj+1)+i}')
            o.append(f'buffer_store_dwordx4 {vr(d)}, v5, s[12:15], s16 offen offset:{i*256}')
        return o
    n0 = norm(0, False)
    k = 0
    for m in tailm:
        p(m)
        for _ in range(2):
            p(n0[k])
            k += 1
    for x in n0[k:]:
        p(x)
    for q in (1, 2, 3):
        for x in norm(q, True):
            p(x)
    stamp(p, 4)
    p('s_cmp_lg_u64 s[38:39], 0')
    p('s_cselect_b32 s17, 1, 0')
    p('v_mov_b32 v14, s17')
    p('s_lshl_b32 s18, s3, 2')
    p('s_add_u32 s18, s18, 0x20000')
    p('v_mov_b32 v15, s18')
    p('ds_write_b32 v15, v14')
    p('v_mov_b32 v14, 0x20000')
    p('s_waitcnt lgkmcnt(0)')
    p('s_barrier')
    p('ds_read_b128 v[16:19], v14')
    p('s_waitcnt lgkmcnt(0)')
    p('v_or_b32 v16, v16, v17')
    p('v_or3_b32 v16, v16, v18, v19')
    p('s_nop 0')
    p('v_readfirstlane_b32 s17, v16')
    p('s_cmp_gt_u32 s17, s35')
    p('s_cbranch_scc1 Lm_fallback')
    if opt['stamp']:
        p('s_waitcnt vmcnt(0)')
        stamp(p, 5)
        p('s_memrealtime s[62:63]')
        p('s_waitcnt lgkmcnt(0)')
        p(f's_cmp_lg_u32 s2, {opt["stamp"] - 1}')
        p('s_cbranch_scc1 Lm_done')
        p('s_cmp_lg_u32 s3, 0')
        p('s_cbranch_scc1 Lm_done')
        srd(p, 4, 30, 31, 256)
        p('v_mov_b32 v12, 0')
        for k in range(1, 6):
            p(f's_sub_u32 s{40+2*k}, s{40+2*k}, s40')
            p(f'v_mov_b32 v13, s{40+2*k}')
            p(f'buffer_store_dword v13, v12, s[4:7], 0 offen offset:{4*k}')
        p('s_sub_u32 s62, s62, s60')
        p('v_mov_b32 v13, s62')
        p('buffer_store_dword v13, v12, s[4:7], 0 offen offset:0')
    p('Lm_done:')
    p('s_endpgm')
    epi_end = len(p.l)

    p('Lm_fallback:')
    p('s_mov_b32 s35, 1')
    p('s_waitcnt vmcnt(0) lgkmcnt(0)')
    p('s_lshl_b32 s17, s3, 10')
    p('s_mov_b32 m0, s17')
    p('s_mov_b32 s18, 0')
    p('Lm_fb_loop:')
    p('s_lshr_b32 s16, s18, 2')
    p('s_lshl_b32 s16, s16, 15')
    p('s_and_b32 s34, s18, 3')
    p('s_lshl_b32 s34, s34, 12')
    p('s_add_u32 s16, s16, s34')
    p('s_add_u32 s16, s16, s17')
    p('s_barrier')
    p(f'buffer_load_dwordx4 v{V_L16}, s[8:11], s16 offen lds')
    p('s_waitcnt vmcnt(0)')
    p('s_barrier')
    for ks in range(4):
        p(f'ds_read_b128 {ar(AK(0,ks))}, v{V_L16} offset:{ks*1024}')
    p('s_waitcnt lgkmcnt(0)')
    for q in range(4):
        for ks in range(4):
            d = vr(64 + 4 * q)
            p(f'{MF} {d}, {ar(AK(0,ks))}, {ar(AQ(q,ks))}, {d if ks else 0}')
    p('s_nop 7')
    rowmax_first_tile(p)
    p('s_add_u32 s18, s18, 1')
    p('s_cmp_lt_u32 s18, 128')
    p('s_cbranch_scc1 Lm_fb_loop')
    p('s_barrier')
    p('s_branch Lm_restart')

    seq = p.l[:loop_end] + p.l[pre_end:epi_end]
    probs = check_hazards(seq, 'main') + check_hazards(p.l[epi_end:], 'fb')
    for x in probs:
        print('HAZARD', x, file=sys.stderr)
    return p


def kd(name, nv, acc, ns):
    return f"""
.amdhsa_kernel {name}
  .amdhsa_next_free_vgpr {nv}
  .amdhsa_next_free_sgpr {ns}
  .amdhsa_accum_offset {acc}
  .amdhsa_group_segment_fixed_size 0
  .amdhsa_kernarg_size 80
  .amdhsa_user_sgpr_count 2
  .amdhsa_user_sgpr_kernarg_segment_ptr 1
  .amdhsa_system_sgpr_workgroup_id_x 1
  .amdhsa_float_denorm_mode_32 3
.end_amdhsa_kernel
"""


if __name__ == '__main__':
    pp = prep()
    for x in check_hazards(pp.l, 'prep'):
        print('HAZARD', x, file=sys.stderr)
    pm = main()
    txt = HEADER + pp.text() + pm.text() + '.section .rodata,"a"\n.p2align 6' + kd('prep_kernel', 88, 88, 40) + '.p2align 6' + kd(NAME + '_kernel', 448, 256, 80)
    open(sys.argv[1], 'w').write(txt)
```

```python
import sys, math, struct
from asmlib import Prog, I, check_hazards

NAME = 'standalone__kv_cache_quant_int4_int2_kv_with_per_channel_or_per_token_scales__prompt'
opt = dict(stamp=0, thr=64, nodma=0, nods=0, novalu=0, nobar=0, snake=1, dd=1, traj=0, tmo=4096, stsc=1, forcetmo=0, qnt=1, kvnt=1, scnt=0, ont=0, psleep=0, qa=2, qa0=4, nrep=8, kvsc=0)
for a in sys.argv[2:]:
    k, v = a.split('=')
    opt[k] = int(v, 0)


def f32hex(x):
    return '0x%08x' % struct.unpack('<I', struct.pack('<f', x))[0]


CSCALE = math.log2(math.e) / math.sqrt(128.0)
MF = 'v_mfma_f32_16x16x32_bf16'

HEADER = f"""; KIVI-style int4 KV-cache attention (prefill, GQA 32q/4kv, S=2048, D=128), gfx950.
; @launch grid=(256,1,1) block=(256,1,1) lds=135168
.amdgcn_target "amdgcn-amd-amdhsa--gfx950"
.text
"""


def srd(p, s, lo, hi, nbytes):
    p(f's_mov_b32 s{s}, s{lo}')
    p(f's_and_b32 s{s+1}, s{hi}, 0xffff')
    p(f's_mov_b32 s{s+2}, {nbytes:#x}')
    p(f's_mov_b32 s{s+3}, 0x20000')


def unpack8(p, dst, src):
    for j in range(8):
        if j & 1:
            p(f'v_and_b32 v{dst+j}, 0xffff0000, v{src + (j >> 1)}')
        else:
            p(f'v_lshlrev_b32 v{dst+j}, 16, v{src + (j >> 1)}')


V_L16, V_L16B, V_DS, V_QOFF = 1, 2, 3, 4
V_M = 8
V_T = 12
V_ONE = 28
V_C = 32
V_L = 48


def S(b):
    return 64 + 16 * b


def O(q, db):
    return 128 + 32 * q + 4 * db


def AQ(q, ks):
    return 16 * q + 4 * ks


def AK(tb, ks):
    return 64 + 16 * tb + 4 * ks


def AV(x):
    return 128 + 4 * x


def vr(r, n=4):
    return f'v[{r}:{r+n-1}]'


def ar(r, n=4):
    return f'a[{r}:{r+n-1}]'


def qk_order():
    o = []
    for tb in range(4):
        kss = range(4) if (tb % 2 == 0 or not opt['snake']) else range(3, -1, -1)
        o += [(tb, ks) for ks in kss]
    return o


def qk_mfmas(q):
    out = []
    for x, (tb, ks) in enumerate(qk_order()):
        d = vr(S(q & 1) + 4 * tb)
        c = d if x % 4 else vr(V_C + 4 * q)
        out.append(f'{MF} {d}, {ar(AK(tb,ks))}, {ar(AQ(q,ks))}, {c}')
    return out


def pv_mfmas(q):
    out = []
    for x in range(16):
        db, s = x >> 1, x & 1
        out.append(f'{MF} {vr(O(q,db))}, {vr(S(q & 1)+8*s)}, {ar(AV(x))}, {vr(O(q,db))}')
    for s in range(2):
        out.append(f'{MF} {vr(V_L+4*q)}, {vr(S(q & 1)+8*s)}, {vr(V_ONE)}, {vr(V_L+4*q)}')
    return out


def f_exp(b, e):
    return f'v_exp_f32 v{S(b)+e}, v{S(b)+e}'


def f_cvt(b, jj):
    base = S(b) + 8 * (jj >> 2)
    j = jj & 3
    return f'v_cvt_pk_bf16_f32 v{base+j}, v{base+2*j}, v{base+2*j+1}'


def sm_fill(q, G):
    b = q & 1
    if G % 2 == 0 and G <= 30:
        return [f_exp(b, (G - 8) // 2)] if G >= 8 else [f_exp(1 - b, 12 + G // 2)]
    if G % 4 == 3:
        return [f_cvt(b, (G - 11) // 4)] if G >= 11 else [f_cvt(1 - b, 6 + G // 4)]
    return []


def stamp(p, idx):
    if opt['stamp']:
        p(f's_memrealtime s[{40 + 2*idx}:{41 + 2*idx}]')


def rowmax_first_tile(p):
    for q in range(4):
        p(f'v_max3_f32 v{V_M+q}, v{64+4*q}, v{65+4*q}, v{V_M+q}')
    for q in range(4):
        p(f'v_max3_f32 v{V_M+q}, v{66+4*q}, v{67+4*q}, v{V_M+q}')


def main():
    p = Prog()
    kn = NAME + '_kernel'
    p(f'.globl {kn}\n.p2align 8\n.type {kn},@function\n{kn}:')
    p('s_cmp_ge_u32 s2, 256')
    p('s_cbranch_scc1 Lm_done')
    stamp(p, 0)
    p('s_load_dwordx16 s[64:79], s[0:1], 0')
    p('s_load_dwordx4 s[80:83], s[0:1], 64')
    p('v_lshrrev_b32 v12, 6, v0')
    p('v_and_b32 v0, 63, v0')
    p('v_readfirstlane_b32 s3, v12')
    p(f'v_lshlrev_b32 v{V_L16}, 4, v0')
    p(f'v_add_u32 v{V_L16B}, 4096, v{V_L16}')
    p('s_and_b32 s37, s2, 7')
    p('s_lshl_b32 s37, s37, 5')
    p('s_lshr_b32 s33, s2, 3')
    p('s_add_u32 s37, s37, s33')
    p('s_mov_b32 s62, s37')
    p('s_add_u32 s63, s37, 1')
    p('s_lshr_b32 s33, s37, 6')
    p('s_lshl_b32 s32, s37, 16')
    p('s_lshl_b32 s34, s3, 14')
    p('s_add_u32 s32, s32, s34')
    p('s_lshl_b32 s33, s33, 20')
    p('s_lshl_b32 s19, s3, 13')
    p('s_mov_b32 s35, 0')
    p('s_mov_b32 s61, 0')
    p('v_and_b32 v12, 15, v0')
    p('v_lshrrev_b32 v13, 4, v0')
    p('v_lshlrev_b32 v14, 8, v12')
    p(f'v_lshl_add_u32 v{V_QOFF}, v13, 4, v14')
    p('s_and_b32 s34, s37, 0xc0')
    p('s_lshl_b32 s34, s34, 1')
    p('s_add_u32 s34, s34, 0x408000')
    p('s_waitcnt lgkmcnt(0)')
    stamp(p, 1)
    p('s_load_dword s98, s[82:83], s34')
    p('s_add_u32 s8, s82, s33')
    p('s_addc_u32 s9, s83, 0')
    srd(p, 8, 8, 9, 1 << 20)
    SC = ['', ' sc1', ' sc0 sc1', ' sc1 nt'][opt['stsc']]
    KN = ' nt' if opt['kvnt'] else ''
    SN = ' nt' if opt['scnt'] else ''
    QN = ' nt' if opt['qnt'] else ''
    DS_ = ' sc1' if opt['kvsc'] else ''
    init = []
    for r in range(128, 256):
        init.append(f'v_mov_b32 v{r}, 0')
    for r in range(16):
        init.append(f'v_mov_b32 v{V_L+r}, 0')
    for r in range(64):
        init.append(f'v_accvgpr_write_b32 a{128+r}, 0')
    for r in range(4):
        init.append(f'v_mov_b32 v{V_ONE+r}, 0x3f803f80')
    for r in range(12):
        init.append(f'v_mov_b32 v{S(1)+r}, 0')
    for r in range(12, 16):
        init.append(f'v_mov_b32 v{S(1)+r}, 0xff800000')

    def qload(q0, q1):
        for q in range(q0, q1):
            p(f's_add_u32 s34, s32, {q*4096}')
            for ks in range(4):
                p(f'buffer_load_dwordx4 {ar(AQ(q,ks))}, v{V_QOFF}, s[4:7], s34 offen offset:{ks*64}{QN}')
    qa = opt['qa']
    p('Lm_prep:')
    p('s_cmp_ge_u32 s3, 2')
    p('s_cbranch_scc1 Lm_prepv')
    srd(p, 20, 66, 67, 4 << 20)
    p('v_and_b32 v12, 7, v0')
    p('v_lshrrev_b32 v13, 3, v0')
    srd(p, 24, 70, 71, 16384)
    p('v_lshlrev_b32 v14, 5, v13')
    p('v_lshl_add_u32 v14, v12, 9, v14')
    srd(p, 28, 72, 73, 16384)
    p('v_lshlrev_b32 v15, 4, v13')
    p('s_lshr_b32 s17, s62, 2')
    p('s_lshl_b32 s17, s17, 8')
    p('s_lshl_b32 s16, s62, 14')
    p('s_add_u32 s16, s16, s19')
    for ch in range(2):
        p(f'buffer_load_dwordx4 v[{96+4*ch}:{99+4*ch}], v15, s[24:27], s17 offen offset:{ch*128}{SN}')
        p(f'buffer_load_dwordx4 v[{104+4*ch}:{107+4*ch}], v15, s[28:31], s17 offen offset:{ch*128}{SN}')
    for t in range(2):
        for ch in range(2):
            for hf in range(2):
                r = 64 + (t * 2 + ch) * 8 + hf * 4
                p(f'buffer_load_dwordx4 v[{r}:{r+3}], v14, s[20:23], s16 offen offset:{ch * 256 + hf * 16}{KN}')
        if t == 0:
            p('s_add_u32 s16, s16, 4096')
    srd(p, 4, 64, 65, 16 << 20)
    qload(0, qa)
    p('v_lshlrev_b32 v16, 8, v13')
    p('v_lshl_add_u32 v16, v12, 4, v16')
    p('s_and_b32 s16, s62, 63')
    p('s_lshr_b32 s17, s16, 1')
    p('s_lshl_b32 s17, s17, 15')
    p('s_and_b32 s16, s16, 1')
    p('s_lshl_b32 s16, s16, 1')
    p('s_add_u32 s16, s16, s3')
    p('s_lshl_b32 s16, s16, 12')
    p('s_add_u32 s16, s16, s17')
    p(f's_mov_b32 s17, {f32hex(CSCALE)}')
    for x in init[:128] + init[144:212]:
        p(x)
    p(f's_waitcnt vmcnt({8 + 4*qa})')
    for ch in range(2):
        unpack8(p, 32 + 8 * ch, 96 + 4 * ch)
        unpack8(p, 48 + 8 * ch, 104 + 4 * ch)
    for j in range(16):
        p(f'v_mul_f32 v{32+j}, s17, v{32+j}')
    for j in range(16):
        p(f'v_mul_f32 v{48+j}, -v{48+j}, v{32+j}')
    for ps in range(4):
        t, ch = ps >> 1, ps & 1
        p(f's_waitcnt vmcnt({6 - 2 * ps + ps + 4*qa})')
        if ps == 3:
            stamp(p, 2)
        r = 64 + ps * 8
        for j in range(8):
            p(f'v_cvt_f32_i32 v{r+j}, v{r+j}')
        for j in range(0, 8, 2):
            p(f'v_pk_fma_f32 {vr(r+j,2)}, {vr(r+j,2)}, {vr(32+8*ch+j,2)}, {vr(48+8*ch+j,2)}')
        for j in range(4):
            p(f'v_cvt_pk_bf16_f32 v{r+j}, v{r+2*j}, v{r+2*j+1}')
        p(f'buffer_store_dwordx4 v[{r}:{r+3}], v16, s[8:11], s16 offen offset:{ch * 2048 + t * 128}{SC}')
    p('s_branch Lm_prepdone')
    p('Lm_prepv:')
    srd(p, 20, 68, 69, 4 << 20)
    p('v_and_b32 v12, 15, v0')
    p('v_lshrrev_b32 v13, 4, v0')
    srd(p, 24, 74, 75, 16384)
    p('v_lshlrev_b32 v14, 5, v12')
    p('v_lshl_add_u32 v14, v13, 11, v14')
    srd(p, 28, 76, 77, 16384)
    p('v_lshlrev_b32 v15, 3, v13')
    p('s_lshl_b32 s17, s62, 6')
    p('s_lshl_b32 s16, s62, 14')
    p('s_and_b32 s34, s3, 1')
    p('s_lshl_b32 s34, s34, 4')
    p('s_add_u32 s16, s16, s34')
    p(f'buffer_load_dwordx2 v[96:97], v15, s[24:27], s17 offen{SN}')
    p(f'buffer_load_dwordx2 v[98:99], v15, s[24:27], s17 offen offset:32{SN}')
    p(f'buffer_load_dwordx2 v[100:101], v15, s[28:31], s17 offen{SN}')
    p(f'buffer_load_dwordx2 v[102:103], v15, s[28:31], s17 offen offset:32{SN}')
    for j in range(8):
        if j == 4:
            p('s_add_u32 s16, s16, 8192')
        r = 64 + 4 * j
        p(f'buffer_load_dwordx4 v[{r}:{r+3}], v14, s[20:23], s16 offen offset:{(j & 3) * 512}{KN}')
    srd(p, 4, 64, 65, 16 << 20)
    qload(0, qa)
    p('s_and_b32 s16, s62, 63')
    p('s_lshr_b32 s17, s16, 1')
    p('s_lshl_b32 s17, s17, 15')
    p('s_and_b32 s16, s16, 1')
    p('s_lshl_b32 s16, s16, 10')
    p('s_add_u32 s16, s16, s17')
    p('s_add_u32 s16, s16, s19')
    for x in init[:128] + init[144:212]:
        p(x)
    p(f's_waitcnt vmcnt({8 + 4*qa})')
    unpack8(p, 32, 96)
    unpack8(p, 40, 100)
    for j in range(8):
        p(f'v_mul_f32 v{40+j}, -v{40+j}, v{32+j}')
    for j in range(8):
        p(f's_waitcnt vmcnt({7 - j + 4*qa})')
        if j == 7:
            stamp(p, 2)
        r = 64 + 4 * j
        for db in range(4):
            p(f'v_cvt_f32_i32 v{r+db}, v{r+db}')
        je = j & ~1
        sel = 'op_sel:[0,1,1] op_sel_hi:[1,1,1]' if j & 1 else 'op_sel:[0,0,0] op_sel_hi:[1,0,0]'
        for db in range(0, 4, 2):
            p(f'v_pk_fma_f32 {vr(r+db,2)}, {vr(r+db,2)}, {vr(32+je,2)}, {vr(40+je,2)} {sel}')
        if j & 1:
            for db in range(4):
                p(f'v_cvt_pk_bf16_f32 v{104 + 4*db + (j >> 1)}, v{r - 4 + db}, v{r + db}')
    for db in range(4):
        p(f'buffer_store_dwordx4 v[{104+4*db}:{104+4*db+3}], v{V_L16B if db & 2 else V_L16}, s[8:11], s16 offen offset:{(db & 1) * 2048}{SC}')
    p('Lm_prepdone:')
    p('s_add_u32 s62, s62, 1')
    p('s_cmp_lt_u32 s62, s63')
    p('s_cbranch_scc1 Lm_prep')
    srd(p, 12, 78, 79, 16 << 20)
    p('s_cmp_eq_u32 s3, 0')
    p('s_cbranch_scc1 Lm_w0')
    qload(qa, 4)
    p(f's_waitcnt vmcnt({16 - 4*qa})')
    stamp(p, 3)
    p('s_barrier')
    p('v_mov_b32 v13, 0x20010')
    p('s_barrier')
    p('ds_read_b32 v12, v13')
    p('s_waitcnt lgkmcnt(0)')
    p('v_readfirstlane_b32 s18, v12')
    p('s_branch Lm_afterpoll')
    p('Lm_w0:')
    p('s_and_b32 s16, s37, 0xc0')
    p('s_lshl_b32 s16, s16, 7')
    p('s_add_u32 s84, s82, s16')
    p('s_addc_u32 s85, s83, 0')
    p('s_add_u32 s84, s84, 0x400000')
    p('s_addc_u32 s85, s85, 0')
    srd(p, 84, 84, 85, 8192)
    p('v_lshrrev_b32 v13, 3, v0')
    p('v_and_b32 v14, 7, v0')
    p('v_lshlrev_b32 v13, 7, v13')
    p('v_lshl_add_u32 v13, v14, 2, v13')
    p('v_lshlrev_b32 v14, 10, v0')
    p('s_and_b32 s16, s37, 0x38')
    p('s_lshl_b32 s16, s16, 4')
    p('s_and_b32 s17, s37, 7')
    p('s_lshl_b32 s18, s17, 2')
    p('s_add_u32 s16, s16, s18')
    p(f's_and_b32 s17, s17, {opt["nrep"] - 1}')
    p('s_lshl_b32 s17, s17, 10')
    p('s_waitcnt vmcnt(0) lgkmcnt(0)')
    stamp(p, 3)
    p('s_mul_i32 s99, s98, 0x9e3779b1')
    p('s_add_u32 s99, s99, 0x85ebca6b')
    p('v_mov_b32 v12, s99')
    p('s_mov_b32 s18, 0')
    p('s_barrier')
    p('s_cmp_lg_u32 s61, 0')
    p('s_cbranch_scc1 Lm_pollok')
    p(f's_mov_b64 exec, {(1 << opt["nrep"]) - 1}')
    p('buffer_store_dword v12, v14, s[84:87], s16 offen sc1')
    p('s_mov_b64 exec, -1')
    p('Lm_poll:')
    p('buffer_load_dword v15, v13, s[84:87], s17 offen sc1')
    p('s_add_u32 s18, s18, 1')
    p('s_waitcnt vmcnt(0)')
    p('v_cmp_ne_u32 vcc, v15, v12')
    if opt['forcetmo']:
        p('s_mov_b64 vcc, 1')
    p('s_cbranch_vccz Lm_pollgot')
    if opt['psleep']:
        p(f's_sleep {opt["psleep"]}')
    p(f's_cmp_lt_u32 s18, {opt["tmo"]}')
    p('s_cbranch_scc1 Lm_poll')
    p('s_mov_b32 s18, 1')
    p('s_branch Lm_pollok')
    p('Lm_pollgot:')
    if opt['stamp']:
        p('s_mov_b32 s60, s18')
    p('s_mov_b32 s18, 0')
    p('Lm_pollok:')
    p('v_mov_b32 v12, s18')
    p('v_mov_b32 v13, 0x20010')
    p('ds_write_b32 v13, v12')
    stamp(p, 4)
    p('s_waitcnt lgkmcnt(0)')
    p('s_barrier')
    qload(qa, 4)
    p('Lm_afterpoll:')
    for q in range(4):
        p(f'v_mov_b32 v{V_M+q}, 0xff800000')
    p('s_cmp_lg_u32 s18, 0')
    p('s_cbranch_scc1 Lm_selfmade')
    p('Lm_restart:')
    p('s_mov_b32 s16, s19')

    def dma_stage(n):
        p(f's_add_u32 m0, s19, {n*32768}')
        p('s_nop 0')
        for k in range(4):
            p(f'buffer_load_dwordx4 v{V_L16}, s[8:11], s16 offen offset:{k*1024}{DS_} lds')
        p(f's_add_u32 m0, s19, {n*32768 + 4096}')
        p('s_nop 0')
        for k in range(4):
            p(f'buffer_load_dwordx4 v{V_L16B}, s[8:11], s16 offen offset:{k*1024}{DS_} lds')
        p('s_add_u32 s16, s16, 0x8000')
    dma_stage(0)
    dma_stage(1)
    dma_stage(2)
    if opt['traj'] or opt['stamp']:
        p('s_add_u32 s88, s82, 0x800000')
        p('s_addc_u32 s89, s83, 0')
        srd(p, 88, 88, 89, 1 << 20)
        p('s_lshl_b32 s92, s2, 2')
        p('s_add_u32 s92, s92, s3')
        p('s_lshl_b32 s92, s92, 9')
        p('s_add_u32 s93, s92, 256')
    for x in init[128:144] + init[212:]:
        p(x)
    p(f'v_mov_b32 v{V_DS}, v{V_L16}')
    p('s_mov_b32 s17, 0')
    p('s_add_u32 s36, s19, 0x18000')
    p('s_mov_b32 s18, 0')
    p('s_waitcnt vmcnt(16)')
    p('s_barrier')
    stamp(p, 5)
    for tb, ks in qk_order():
        p(f'ds_read_b128 {ar(AK(tb,ks))}, v{V_DS} offset:{(tb*4+ks)*1024}')
    p('s_waitcnt lgkmcnt(%d)' % (0 if opt['stamp'] else 12))
    for q in range(4):
        for ks in range(4):
            d = vr(64 + 4 * q)
            p(f'{MF} {d}, {ar(AK(0,ks))}, {ar(AQ(q,ks))}, {d if ks else 0}')
    p('s_nop 4')
    rowmax_first_tile(p)
    for sw in ('v_permlane32_swap_b32', 'v_permlane16_swap_b32'):
        for q in range(4):
            p(f'v_mov_b32 v{V_T+q}, v{V_M+q}')
        for q in range(4):
            p(f'{sw} v{V_T+q}, v{V_M+q}')
        for q in range(4):
            p(f'v_max_f32 v{V_M+q}, v{V_T+q}, v{V_M+q}')
    for q in range(4):
        for i in range(4):
            p(f'v_sub_f32 v{V_C+4*q+i}, 0, v{V_M+q}')
    stamp(p, 6)
    p('s_waitcnt lgkmcnt(0)')
    pre_end = len(p.l)

    loop = Prog()
    dma_k = 0
    order = qk_order()
    for q in range(4):
        mf = qk_mfmas(q) + pv_mfmas((q - 1) & 3)
        for G in range(34):
            pre = []
            sh = []
            fill = [] if opt['novalu'] else sm_fill(q, G)
            rd = []
            if opt['dd']:
                if q == 0 and G >= 17 and G % 4 == 1:
                    rd = [('v', 2 * ((G - 17) // 4) + k) for k in range(2)]
                if q == 1 and G in (1, 5, 9):
                    rd = [('v', 10 + 2 * ((G - 1) // 4) + k) for k in range(2)]
                if q == 3 and G % 4 == 1 and G <= 29:
                    rd = [('k', 2 * ((G - 1) // 4) + k) for k in range(2)]
            else:
                if q == 0 and G >= 17 and G % 2 == 1:
                    rd = [('v', (G - 17) // 2)]
                if q == 1 and G % 2 == 1 and G <= 13:
                    rd = [('v', 9 + (G - 1) // 2)]
                if q == 3 and G % 2 == 1 and G <= 31:
                    rd = [('k', (G - 1) // 2)]
            if not opt['nods']:
                for kind, r in rd:
                    if kind == 'v':
                        sh.append(f'ds_read_b128 {ar(AV(r))}, v{V_DS} offset:{16384 + r*1024}')
                    else:
                        tb, ks = order[r]
                        sh.append(f'ds_read_b128 {ar(AK(tb,ks))}, v{V_DS} offset:{(tb*4+ks)*1024}')
            if q == 0 and G == 7:
                sh.append('s_waitcnt lgkmcnt(0)')
            if q == 1 and G == 15:
                sh.append('s_waitcnt lgkmcnt(6)')
            if q == 1 and G == 25:
                sh.append('s_waitcnt lgkmcnt(0)')
            if q == 3 and G == 32:
                sh.append('s_waitcnt lgkmcnt(8)')
            if q == 0 and G == 4:
                sh.append('s_mov_b32 m0, s36')
            if q == 2 and G == 4:
                sh.append('s_add_u32 m0, s36, 4096')
            if ((q == 0 and G in (5, 13)) or (q == 1 and G in (21, 29)) or (q == 2 and G in (5, 13, 21, 29))):
                if not opt['nodma']:
                    sh.append(f'buffer_load_dwordx4 v{V_L16 if dma_k < 4 else V_L16B}, s[8:11], s16 offen offset:{(dma_k & 3)*1024}{DS_} lds')
                dma_k += 1
            if q == 2:
                if G == 6:
                    sh.append('s_add_u32 s36, s17, s19')
                if G == 8:
                    sh.append('s_add_u32 s17, s17, 0x8000')
                if G == 10:
                    sh.append('s_and_b32 s17, s17, 0x1ffff')
                if G == 17:
                    fill.append(f'v_add_u32 v{V_DS}, s17, v{V_L16}')
                if G == 30:
                    sh.append('s_add_u32 s16, s16, 0x8000')
                if G == 12:
                    sh.append('s_add_u32 s18, s18, 1')
                if G == 32:
                    sh.append('s_waitcnt vmcnt(16)')
                if G == 33 and not opt['nobar']:
                    sh.append('s_barrier')
                if opt['traj']:
                    if G == 0:
                        sh.append('s_memtime s[94:95]')
                    if G == 2:
                        sh.append('s_memrealtime s[96:97]')
                    if G == 22:
                        sh.append('s_waitcnt lgkmcnt(0)')
                    if G == 25:
                        fill += ['v_mov_b32 v12, s94', 'v_mov_b32 v13, s96']
                    if G == 32:
                        fill += ['v_mov_b32 v14, s92']
                    if G == 33:
                        fill += ['buffer_store_dwordx2 v[12:13], v14, s[88:91], 0 offen', 's_add_u32 s92, s92, 8']
            if q == 3 and G == 30:
                sh.append('s_cmp_lt_u32 s18, 32')
            if q == 3 and G == 33:
                sh.append('s_cbranch_scc1 Lm_loop')
            loop(mf[G])
            for x in sh + fill:
                loop(x)
    head = Prog()
    head('.p2align 6')
    head('Lm_loop:')
    p.extend(head)
    p.extend(loop)
    loop_end = len(p.l)

    stamp(p, 7)
    for e in range(12, 16):
        p(f_exp(1, e))
    p('s_or_b32 s16, s3, s35')
    p('s_cbranch_scc1 Lm_noarrive')
    srd(p, 84, 80, 81, 256)
    p('s_and_b32 s16, s37, 0xc0')
    p('v_mov_b32 v6, 1')
    p('s_mov_b64 exec, 1')
    p('buffer_atomic_add v6, off, s[84:87], s16 sc0 sc1')
    p('s_mov_b64 exec, -1')
    p('Lm_noarrive:')
    p('v_and_b32 v12, 15, v0')
    p(f_cvt(1, 6))
    p(f_cvt(1, 7))
    p('v_lshrrev_b32 v13, 4, v0')
    p('v_lshlrev_b32 v12, 4, v12')
    tailm = pv_mfmas(3)
    tailm = tailm[16:] + tailm[:16]
    p('v_lshl_add_u32 v5, v13, 10, v12')
    p(f's_mov_b32 s17, {f32hex(2.0**opt["thr"])}')
    p('s_mov_b64 s[38:39], 0')
    ep = []

    def norm(q, pk):
        o = []
        for i in range(4):
            o.append(f'v_cmp_ngt_f32 vcc, s17, v{V_L+4*q+i}')
            o.append(f'v_rcp_f32 v{V_L+4*q+i}, v{V_L+4*q+i}')
            o.append('s_or_b64 s[38:39], s[38:39], vcc')
        o.append(f's_add_u32 s16, s32, {q*4096}')
        for i in range(4):
            if pk:
                if i % 2 == 0:
                    for db in range(8):
                        r = O(q, db) + i
                        o.append(f'v_pk_mul_f32 {vr(r,2)}, {vr(r,2)}, {vr(V_L+4*q+i,2)}')
            else:
                for db in range(8):
                    r = O(q, db) + i
                    o.append(f'v_mul_f32 v{r}, v{r}, v{V_L+4*q+i}')
            d = 96 + 4 * ((4 * q + i) % 8)
            for jj in range(4):
                o.append(f'v_cvt_pk_bf16_f32 v{d+jj}, v{O(q,2*jj)+i}, v{O(q,2*jj+1)+i}')
            o.append(f'buffer_store_dwordx4 {vr(d)}, v5, s[12:15], s16 offen offset:{i*256}' + ['', ' nt', ' sc1', ' sc0 sc1', ' sc1 nt'][opt['ont']])
        return o
    n0 = norm(0, False)
    k = 0
    for m in tailm:
        p(m)
        for _ in range(2):
            p(n0[k])
            k += 1
    for x in n0[k:]:
        p(x)
    for q in (1, 2, 3):
        for x in norm(q, True):
            p(x)
    stamp(p, 8)
    p('s_cmp_lg_u64 s[38:39], 0')
    p('s_cselect_b32 s17, 1, 0')
    p('v_mov_b32 v14, s17')
    p('s_lshl_b32 s18, s3, 2')
    p('s_add_u32 s18, s18, 0x20000')
    p('v_mov_b32 v15, s18')
    p('ds_write_b32 v15, v14')
    p('v_mov_b32 v14, 0x20000')
    p('s_waitcnt lgkmcnt(0)')
    p('s_barrier')
    p('ds_read_b128 v[16:19], v14')
    p('s_waitcnt lgkmcnt(0)')
    p('v_or_b32 v16, v16, v17')
    p('v_or3_b32 v16, v16, v18, v19')
    p('s_nop 0')
    p('v_readfirstlane_b32 s17, v16')
    p('s_cmp_gt_u32 s17, s35')
    p('s_cbranch_scc1 Lm_fallback')
    p('s_cmp_lg_u32 s3, 0')
    p('s_cbranch_scc1 Lm_noepoch')
    p('s_waitcnt vmcnt(16)')
    p('v_readfirstlane_b32 s17, v6')
    p('s_cmp_lg_u32 s17, 63')
    p('s_cbranch_scc1 Lm_noepoch')
    p('s_add_u32 s84, s82, 0x408000')
    p('s_addc_u32 s85, s83, 0')
    srd(p, 84, 84, 85, 512)
    p('s_and_b32 s16, s37, 0xc0')
    p('s_lshl_b32 s16, s16, 1')
    p('v_mov_b32 v12, s99')
    p('s_mov_b64 exec, 1')
    p('buffer_store_dword v12, off, s[84:87], s16')
    p('s_mov_b64 exec, -1')
    p('Lm_noepoch:')
    if opt['stamp']:
        p('s_waitcnt vmcnt(0)')
        stamp(p, 9)
        p('s_waitcnt lgkmcnt(0)')
        p('v_mov_b32 v12, s93')
        for k in range(11):
            p(f'v_mov_b32 v13, s{40+2*k}')
            p(f'buffer_store_dword v13, v12, s[88:91], 0 offen offset:{4*k}')
    p('Lm_done:')
    p('s_endpgm')
    epi_end = len(p.l)

    p('Lm_fallback:')
    p('s_mov_b32 s35, 1')
    p('s_waitcnt vmcnt(0) lgkmcnt(0)')
    p('s_lshl_b32 s17, s3, 10')
    p('s_mov_b32 m0, s17')
    p('s_mov_b32 s18, 0')
    p('Lm_fb_loop:')
    p('s_lshr_b32 s16, s18, 2')
    p('s_lshl_b32 s16, s16, 15')
    p('s_and_b32 s34, s18, 3')
    p('s_lshl_b32 s34, s34, 12')
    p('s_add_u32 s16, s16, s34')
    p('s_add_u32 s16, s16, s17')
    p('s_barrier')
    p(f'buffer_load_dwordx4 v{V_L16}, s[8:11], s16 offen lds')
    p('s_waitcnt vmcnt(0)')
    p('s_barrier')
    for ks in range(4):
        p(f'ds_read_b128 {ar(AK(0,ks))}, v{V_L16} offset:{ks*1024}')
    p('s_waitcnt lgkmcnt(0)')
    for q in range(4):
        for ks in range(4):
            d = vr(64 + 4 * q)
            p(f'{MF} {d}, {ar(AK(0,ks))}, {ar(AQ(q,ks))}, {d if ks else 0}')
    p('s_nop 7')
    rowmax_first_tile(p)
    p('s_add_u32 s18, s18, 1')
    p('s_cmp_lt_u32 s18, 128')
    p('s_cbranch_scc1 Lm_fb_loop')
    for x in init[:128] + init[144:212]:
        p(x)
    p('s_barrier')
    p('s_branch Lm_restart')

    p('Lm_selfmade:')
    p('s_mov_b32 s61, 1')
    p('s_and_b32 s62, s37, 0xc0')
    p('s_add_u32 s63, s62, 64')
    p('s_waitcnt vmcnt(0)')
    p('s_barrier')
    p('s_branch Lm_prep')

    seq = p.l[:loop_end] + p.l[pre_end:epi_end]
    probs = check_hazards(seq, 'main') + check_hazards(p.l[epi_end:], 'fb')
    for x in probs:
        print('HAZARD', x, file=sys.stderr)
    return p


def kd(name, nv, acc, ns):
    return f"""
.amdhsa_kernel {name}
  .amdhsa_next_free_vgpr {nv}
  .amdhsa_next_free_sgpr {ns}
  .amdhsa_accum_offset {acc}
  .amdhsa_group_segment_fixed_size 0
  .amdhsa_kernarg_size 80
  .amdhsa_user_sgpr_count 2
  .amdhsa_user_sgpr_kernarg_segment_ptr 1
  .amdhsa_system_sgpr_workgroup_id_x 1
  .amdhsa_float_denorm_mode_32 3
.end_amdhsa_kernel
"""


if __name__ == '__main__':
    pm = main()
    txt = HEADER + pm.text() + '.section .rodata,"a"\n.p2align 6' + kd(NAME + '_kernel', 448, 256, 102)
    open(sys.argv[1], 'w').write(txt)
```

```python
import sys, math, struct
from asmlib import Prog, I, check_hazards

NAME = 'standalone__kv_cache_quant_int4_int2_kv_with_per_channel_or_per_token_scales__prompt'
opt = dict(stamp=0, thr=64, nodma=0, nods=0, novalu=0, nobar=0, snake=1, dd=1, traj=0, tmo=4096, stsc=1, forcetmo=0, qnt=0, kvnt=0, scnt=0, ont=1, psleep=0, qa=2, qa0=4, nrep=8, kvsc=1, spin_a=0, spin_b=0, spin_wg=100, dbgst=0)
for a in sys.argv[2:]:
    k, v = a.split('=')
    opt[k] = int(v, 0)


def f32hex(x):
    return '0x%08x' % struct.unpack('<I', struct.pack('<f', x))[0]


CSCALE = math.log2(math.e) / math.sqrt(128.0)
MF = 'v_mfma_f32_16x16x32_bf16'

HEADER = f"""; KIVI-style int4 KV-cache attention (prefill, GQA 32q/4kv, S=2048, D=128), gfx950.
; @launch grid=(256,1,1) block=(256,1,1) lds=135168
.amdgcn_target "amdgcn-amd-amdhsa--gfx950"
.text
"""


def srd(p, s, lo, hi, nbytes):
    p(f's_mov_b32 s{s}, s{lo}')
    p(f's_and_b32 s{s+1}, s{hi}, 0xffff')
    p(f's_mov_b32 s{s+2}, {nbytes:#x}')
    p(f's_mov_b32 s{s+3}, 0x20000')


def unpack8(p, dst, src):
    for j in range(8):
        if j & 1:
            p(f'v_and_b32 v{dst+j}, 0xffff0000, v{src + (j >> 1)}')
        else:
            p(f'v_lshlrev_b32 v{dst+j}, 16, v{src + (j >> 1)}')


V_L16, V_L16B, V_DS, V_QOFF = 1, 2, 3, 4
V_M = 8
V_T = 12
V_ONE = 28
V_C = 32
V_L = 48


def S(b):
    return 64 + 16 * b


def O(q, db):
    return 128 + 32 * q + 4 * db


def AQ(q, ks):
    return 16 * q + 4 * ks


def AK(tb, ks):
    return 64 + 16 * tb + 4 * ks


def AV(x):
    return 128 + 4 * x


def vr(r, n=4):
    return f'v[{r}:{r+n-1}]'


def ar(r, n=4):
    return f'a[{r}:{r+n-1}]'


def qk_order():
    o = []
    for tb in range(4):
        kss = range(4) if (tb % 2 == 0 or not opt['snake']) else range(3, -1, -1)
        o += [(tb, ks) for ks in kss]
    return o


def qk_mfmas(q):
    out = []
    for x, (tb, ks) in enumerate(qk_order()):
        d = vr(S(q & 1) + 4 * tb)
        c = d if x % 4 else vr(V_C + 4 * q)
        out.append(f'{MF} {d}, {ar(AK(tb,ks))}, {ar(AQ(q,ks))}, {c}')
    return out


def pv_mfmas(q):
    out = []
    for x in range(16):
        db, s = x >> 1, x & 1
        out.append(f'{MF} {vr(O(q,db))}, {vr(S(q & 1)+8*s)}, {ar(AV(x))}, {vr(O(q,db))}')
    for s in range(2):
        out.append(f'{MF} {vr(V_L+4*q)}, {vr(S(q & 1)+8*s)}, {vr(V_ONE)}, {vr(V_L+4*q)}')
    return out


def f_exp(b, e):
    return f'v_exp_f32 v{S(b)+e}, v{S(b)+e}'


def f_cvt(b, jj):
    base = S(b) + 8 * (jj >> 2)
    j = jj & 3
    return f'v_cvt_pk_bf16_f32 v{base+j}, v{base+2*j}, v{base+2*j+1}'


def sm_fill(q, G):
    b = q & 1
    if G % 2 == 0 and G <= 30:
        return [f_exp(b, (G - 8) // 2)] if G >= 8 else [f_exp(1 - b, 12 + G // 2)]
    if G % 4 == 3:
        return [f_cvt(b, (G - 11) // 4)] if G >= 11 else [f_cvt(1 - b, 6 + G // 4)]
    return []


def stamp(p, idx):
    if opt['stamp']:
        p(f's_memrealtime s[{40 + 2*idx}:{41 + 2*idx}]')


def rowmax_first_tile(p):
    for q in range(4):
        p(f'v_max3_f32 v{V_M+q}, v{64+4*q}, v{65+4*q}, v{V_M+q}')
    for q in range(4):
        p(f'v_max3_f32 v{V_M+q}, v{66+4*q}, v{67+4*q}, v{V_M+q}')


def main():
    p = Prog()
    kn = NAME + '_kernel'
    p(f'.globl {kn}\n.p2align 8\n.type {kn},@function\n{kn}:')
    p('s_cmp_ge_u32 s2, 256')
    p('s_cbranch_scc1 Lm_done')
    stamp(p, 0)
    p('s_load_dwordx16 s[64:79], s[0:1], 0')
    p('s_load_dwordx4 s[80:83], s[0:1], 64')
    p('v_lshrrev_b32 v12, 6, v0')
    p('v_and_b32 v0, 63, v0')
    p('v_readfirstlane_b32 s3, v12')
    p(f'v_lshlrev_b32 v{V_L16}, 4, v0')
    p(f'v_add_u32 v{V_L16B}, 4096, v{V_L16}')
    p('s_and_b32 s37, s2, 7')
    p('s_lshl_b32 s37, s37, 5')
    p('s_lshr_b32 s33, s2, 3')
    p('s_add_u32 s37, s37, s33')
    p('s_mov_b32 s62, s37')
    p('s_add_u32 s63, s37, 1')
    p('s_lshr_b32 s33, s37, 6')
    p('s_lshl_b32 s32, s37, 16')
    p('s_lshl_b32 s34, s3, 14')
    p('s_add_u32 s32, s32, s34')
    p('s_lshl_b32 s33, s33, 20')
    p('s_lshl_b32 s19, s3, 13')
    p('s_mov_b32 s35, 0')
    p('s_mov_b32 s61, 0')
    p('v_and_b32 v12, 15, v0')
    p('v_lshrrev_b32 v13, 4, v0')
    p('v_lshlrev_b32 v14, 8, v12')
    p(f'v_lshl_add_u32 v{V_QOFF}, v13, 4, v14')
    p('s_and_b32 s34, s37, 0xc0')
    p('s_lshl_b32 s34, s34, 1')
    p('s_add_u32 s34, s34, 0x408000')
    p('s_waitcnt lgkmcnt(0)')
    stamp(p, 1)
    p('s_load_dword s98, s[82:83], s34')
    p('s_add_u32 s8, s82, s33')
    p('s_addc_u32 s9, s83, 0')
    srd(p, 8, 8, 9, 1 << 20)
    SC = ['', ' sc1', ' sc0 sc1', ' sc1 nt'][opt['stsc']]
    KN = ' nt' if opt['kvnt'] else ''
    SN = ' nt' if opt['scnt'] else ''
    QN = ' nt' if opt['qnt'] else ''
    DS_ = ' sc1' if opt['kvsc'] else ''
    init = []
    for r in range(128, 256):
        init.append(f'v_mov_b32 v{r}, 0')
    for r in range(16):
        init.append(f'v_mov_b32 v{V_L+r}, 0')
    for r in range(64):
        init.append(f'v_accvgpr_write_b32 a{128+r}, 0')
    for r in range(4):
        init.append(f'v_mov_b32 v{V_ONE+r}, 0x3f803f80')
    for r in range(12):
        init.append(f'v_mov_b32 v{S(1)+r}, 0')
    for r in range(12, 16):
        init.append(f'v_mov_b32 v{S(1)+r}, 0xff800000')

    def qload(q0, q1):
        for q in range(q0, q1):
            p(f's_add_u32 s34, s32, {q*4096}')
            for ks in range(4):
                p(f'buffer_load_dwordx4 {ar(AQ(q,ks))}, v{V_QOFF}, s[4:7], s34 offen offset:{ks*64}{QN}')
    qa = opt['qa']
    p('Lm_prep:')
    p('s_cmp_ge_u32 s3, 2')
    p('s_cbranch_scc1 Lm_prepv')
    srd(p, 20, 66, 67, 4 << 20)
    p('v_and_b32 v12, 7, v0')
    p('v_lshrrev_b32 v13, 3, v0')
    srd(p, 24, 70, 71, 16384)
    p('v_lshlrev_b32 v14, 5, v13')
    p('v_lshl_add_u32 v14, v12, 9, v14')
    srd(p, 28, 72, 73, 16384)
    p('v_lshlrev_b32 v15, 4, v13')
    p('s_lshr_b32 s17, s62, 2')
    p('s_lshl_b32 s17, s17, 8')
    p('s_lshl_b32 s16, s62, 14')
    p('s_add_u32 s16, s16, s19')
    for ch in range(2):
        p(f'buffer_load_dwordx4 v[{96+4*ch}:{99+4*ch}], v15, s[24:27], s17 offen offset:{ch*128}{SN}')
        p(f'buffer_load_dwordx4 v[{104+4*ch}:{107+4*ch}], v15, s[28:31], s17 offen offset:{ch*128}{SN}')
    for t in range(2):
        for ch in range(2):
            for hf in range(2):
                r = 64 + (t * 2 + ch) * 8 + hf * 4
                p(f'buffer_load_dwordx4 v[{r}:{r+3}], v14, s[20:23], s16 offen offset:{ch * 256 + hf * 16}{KN}')
        if t == 0:
            p('s_add_u32 s16, s16, 4096')
    srd(p, 4, 64, 65, 16 << 20)
    qload(0, qa)
    p('v_lshlrev_b32 v16, 8, v13')
    p('v_lshl_add_u32 v16, v12, 4, v16')
    p('s_and_b32 s16, s62, 63')
    p('s_lshr_b32 s17, s16, 1')
    p('s_lshl_b32 s17, s17, 15')
    p('s_and_b32 s16, s16, 1')
    p('s_lshl_b32 s16, s16, 1')
    p('s_add_u32 s16, s16, s3')
    p('s_lshl_b32 s16, s16, 12')
    p('s_add_u32 s16, s16, s17')
    p(f's_mov_b32 s17, {f32hex(CSCALE)}')
    for x in init[:128] + init[144:212]:
        p(x)
    p(f's_waitcnt vmcnt({8 + 4*qa})')
    for ch in range(2):
        unpack8(p, 32 + 8 * ch, 96 + 4 * ch)
        unpack8(p, 48 + 8 * ch, 104 + 4 * ch)
    for j in range(16):
        p(f'v_mul_f32 v{32+j}, s17, v{32+j}')
    for j in range(16):
        p(f'v_mul_f32 v{48+j}, -v{48+j}, v{32+j}')
    for ps in range(4):
        t, ch = ps >> 1, ps & 1
        p(f's_waitcnt vmcnt({6 - 2 * ps + ps + 4*qa})')
        if ps == 3:
            stamp(p, 2)
        r = 64 + ps * 8
        for j in range(8):
            p(f'v_cvt_f32_i32 v{r+j}, v{r+j}')
        for j in range(0, 8, 2):
            p(f'v_pk_fma_f32 {vr(r+j,2)}, {vr(r+j,2)}, {vr(32+8*ch+j,2)}, {vr(48+8*ch+j,2)}')
        for j in range(4):
            p(f'v_cvt_pk_bf16_f32 v{r+j}, v{r+2*j}, v{r+2*j+1}')
        p(f'buffer_store_dwordx4 v[{r}:{r+3}], v16, s[8:11], s16 offen offset:{ch * 2048 + t * 128}{SC}')
    p('s_branch Lm_prepdone')
    p('Lm_prepv:')
    srd(p, 20, 68, 69, 4 << 20)
    p('v_and_b32 v12, 15, v0')
    p('v_lshrrev_b32 v13, 4, v0')
    srd(p, 24, 74, 75, 16384)
    p('v_lshlrev_b32 v14, 5, v12')
    p('v_lshl_add_u32 v14, v13, 11, v14')
    srd(p, 28, 76, 77, 16384)
    p('v_lshlrev_b32 v15, 3, v13')
    p('s_lshl_b32 s17, s62, 6')
    p('s_lshl_b32 s16, s62, 14')
    p('s_and_b32 s34, s3, 1')
    p('s_lshl_b32 s34, s34, 4')
    p('s_add_u32 s16, s16, s34')
    p(f'buffer_load_dwordx2 v[96:97], v15, s[24:27], s17 offen{SN}')
    p(f'buffer_load_dwordx2 v[98:99], v15, s[24:27], s17 offen offset:32{SN}')
    p(f'buffer_load_dwordx2 v[100:101], v15, s[28:31], s17 offen{SN}')
    p(f'buffer_load_dwordx2 v[102:103], v15, s[28:31], s17 offen offset:32{SN}')
    for j in range(8):
        if j == 4:
            p('s_add_u32 s16, s16, 8192')
        r = 64 + 4 * j
        p(f'buffer_load_dwordx4 v[{r}:{r+3}], v14, s[20:23], s16 offen offset:{(j & 3) * 512}{KN}')
    srd(p, 4, 64, 65, 16 << 20)
    qload(0, qa)
    p('s_and_b32 s16, s62, 63')
    p('s_lshr_b32 s17, s16, 1')
    p('s_lshl_b32 s17, s17, 15')
    p('s_and_b32 s16, s16, 1')
    p('s_lshl_b32 s16, s16, 10')
    p('s_add_u32 s16, s16, s17')
    p('s_add_u32 s16, s16, s19')
    for x in init[:128] + init[144:212]:
        p(x)
    p(f's_waitcnt vmcnt({8 + 4*qa})')
    unpack8(p, 32, 96)
    unpack8(p, 40, 100)
    for j in range(8):
        p(f'v_mul_f32 v{40+j}, -v{40+j}, v{32+j}')
    for j in range(8):
        p(f's_waitcnt vmcnt({7 - j + 4*qa})')
        if j == 7:
            stamp(p, 2)
        r = 64 + 4 * j
        for db in range(4):
            p(f'v_cvt_f32_i32 v{r+db}, v{r+db}')
        je = j & ~1
        sel = 'op_sel:[0,1,1] op_sel_hi:[1,1,1]' if j & 1 else 'op_sel:[0,0,0] op_sel_hi:[1,0,0]'
        for db in range(0, 4, 2):
            p(f'v_pk_fma_f32 {vr(r+db,2)}, {vr(r+db,2)}, {vr(32+je,2)}, {vr(40+je,2)} {sel}')
        if j & 1:
            for db in range(4):
                p(f'v_cvt_pk_bf16_f32 v{104 + 4*db + (j >> 1)}, v{r - 4 + db}, v{r + db}')
    for db in range(4):
        p(f'buffer_store_dwordx4 v[{104+4*db}:{104+4*db+3}], v{V_L16B if db & 2 else V_L16}, s[8:11], s16 offen offset:{(db & 1) * 2048}{SC}')
    p('Lm_prepdone:')
    p('s_add_u32 s62, s62, 1')
    p('s_cmp_lt_u32 s62, s63')
    p('s_cbranch_scc1 Lm_prep')
    srd(p, 12, 78, 79, 16 << 20)
    p('s_cmp_eq_u32 s3, 0')
    p('s_cbranch_scc1 Lm_w0')
    qload(qa, 4)
    p(f's_waitcnt vmcnt({16 - 4*qa})')
    stamp(p, 3)
    p('s_barrier')
    p('v_mov_b32 v13, 0x20010')
    p('s_barrier')
    p('ds_read_b32 v12, v13')
    p('s_waitcnt lgkmcnt(0)')
    p('v_readfirstlane_b32 s18, v12')
    p('s_branch Lm_afterpoll')
    p('Lm_w0:')
    p('s_and_b32 s16, s37, 0xc0')
    p('s_lshl_b32 s16, s16, 7')
    p('s_add_u32 s84, s82, s16')
    p('s_addc_u32 s85, s83, 0')
    p('s_add_u32 s84, s84, 0x400000')
    p('s_addc_u32 s85, s85, 0')
    srd(p, 84, 84, 85, 8192)
    p('v_lshrrev_b32 v13, 3, v0')
    p('v_and_b32 v14, 7, v0')
    p('v_lshlrev_b32 v13, 7, v13')
    p('v_lshl_add_u32 v13, v14, 2, v13')
    p('v_lshlrev_b32 v14, 10, v0')
    p('s_and_b32 s16, s37, 0x38')
    p('s_lshl_b32 s16, s16, 4')
    p('s_and_b32 s17, s37, 7')
    p('s_lshl_b32 s18, s17, 2')
    p('s_add_u32 s16, s16, s18')
    p(f's_and_b32 s17, s17, {opt["nrep"] - 1}')
    p('s_lshl_b32 s17, s17, 10')
    p('s_waitcnt vmcnt(0) lgkmcnt(0)')
    stamp(p, 3)
    p('s_mul_i32 s99, s98, 0x9e3779b1')
    p('s_add_u32 s99, s99, 0x85ebca6b')
    p('v_mov_b32 v12, s99')
    p('s_mov_b32 s18, 0')
    p('s_barrier')
    p('s_cmp_lg_u32 s61, 0')
    p('s_cbranch_scc1 Lm_pollok')
    p(f's_mov_b64 exec, {(1 << opt["nrep"]) - 1}')
    p('buffer_store_dword v12, v14, s[84:87], s16 offen sc1')
    p('s_mov_b64 exec, -1')
    p('Lm_poll:')
    p('buffer_load_dword v15, v13, s[84:87], s17 offen sc1')
    p('s_add_u32 s18, s18, 1')
    p('s_waitcnt vmcnt(0)')
    p('v_cmp_ne_u32 vcc, v15, v12')
    if opt['forcetmo']:
        p('s_mov_b64 vcc, 1')
    p('s_cbranch_vccz Lm_pollgot')
    if opt['psleep']:
        p(f's_sleep {opt["psleep"]}')
    p(f's_cmp_lt_u32 s18, {opt["tmo"]}')
    p('s_cbranch_scc1 Lm_poll')
    p('s_mov_b32 s18, 1')
    p('s_branch Lm_pollok')
    p('Lm_pollgot:')
    if opt['stamp']:
        p('s_mov_b32 s60, s18')
    p('s_mov_b32 s18, 0')
    p('Lm_pollok:')
    p('v_mov_b32 v12, s18')
    p('v_mov_b32 v13, 0x20010')
    p('ds_write_b32 v13, v12')
    stamp(p, 4)
    p('s_waitcnt lgkmcnt(0)')
    p('s_barrier')
    qload(qa, 4)
    p('Lm_afterpoll:')
    for q in range(4):
        p(f'v_mov_b32 v{V_M+q}, 0xff800000')
    p('s_cmp_lg_u32 s18, 0')
    p('s_cbranch_scc1 Lm_selfmade')
    p('Lm_restart:')
    p('s_mov_b32 s16, s19')

    def dma_stage(n):
        p(f's_add_u32 m0, s19, {n*32768}')
        p('s_nop 0')
        for k in range(4):
            p(f'buffer_load_dwordx4 v{V_L16}, s[8:11], s16 offen offset:{k*1024}{DS_} lds')
        p(f's_add_u32 m0, s19, {n*32768 + 4096}')
        p('s_nop 0')
        for k in range(4):
            p(f'buffer_load_dwordx4 v{V_L16B}, s[8:11], s16 offen offset:{k*1024}{DS_} lds')
        p('s_add_u32 s16, s16, 0x8000')
    dma_stage(0)
    dma_stage(1)
    dma_stage(2)
    if opt['traj'] or opt['stamp']:
        p('s_add_u32 s88, s82, 0x800000')
        p('s_addc_u32 s89, s83, 0')
        srd(p, 88, 88, 89, 1 << 20)
        p('s_lshl_b32 s92, s2, 2')
        p('s_add_u32 s92, s92, s3')
        p('s_lshl_b32 s92, s92, 9')
        p('s_add_u32 s93, s92, 256')
    for x in init[128:144] + init[212:]:
        p(x)
    p(f'v_mov_b32 v{V_DS}, v{V_L16}')
    p('s_mov_b32 s17, 0')
    p('s_add_u32 s36, s19, 0x18000')
    p('s_mov_b32 s18, 0')
    p('s_waitcnt vmcnt(16)')
    p('s_barrier')
    stamp(p, 5)
    for tb, ks in qk_order():
        p(f'ds_read_b128 {ar(AK(tb,ks))}, v{V_DS} offset:{(tb*4+ks)*1024}')
    p('s_waitcnt lgkmcnt(%d)' % (0 if opt['stamp'] else 12))
    for q in range(4):
        for ks in range(4):
            d = vr(64 + 4 * q)
            p(f'{MF} {d}, {ar(AK(0,ks))}, {ar(AQ(q,ks))}, {d if ks else 0}')
    p('s_nop 4')
    rowmax_first_tile(p)
    for sw in ('v_permlane32_swap_b32', 'v_permlane16_swap_b32'):
        for q in range(4):
            p(f'v_mov_b32 v{V_T+q}, v{V_M+q}')
        for q in range(4):
            p(f'{sw} v{V_T+q}, v{V_M+q}')
        for q in range(4):
            p(f'v_max_f32 v{V_M+q}, v{V_T+q}, v{V_M+q}')
    for q in range(4):
        for i in range(4):
            p(f'v_sub_f32 v{V_C+4*q+i}, 0, v{V_M+q}')
    stamp(p, 6)
    p('s_waitcnt lgkmcnt(0)')
    pre_end = len(p.l)

    loop = Prog()
    dma_k = 0
    order = qk_order()
    for q in range(4):
        mf = qk_mfmas(q) + pv_mfmas((q - 1) & 3)
        for G in range(34):
            pre = []
            sh = []
            fill = [] if opt['novalu'] else sm_fill(q, G)
            rd = []
            if opt['dd']:
                if q == 0 and G >= 17 and G % 4 == 1:
                    rd = [('v', 2 * ((G - 17) // 4) + k) for k in range(2)]
                if q == 1 and G in (1, 5, 9):
                    rd = [('v', 10 + 2 * ((G - 1) // 4) + k) for k in range(2)]
                if q == 3 and G % 4 == 1 and G <= 29:
                    rd = [('k', 2 * ((G - 1) // 4) + k) for k in range(2)]
            else:
                if q == 0 and G >= 17 and G % 2 == 1:
                    rd = [('v', (G - 17) // 2)]
                if q == 1 and G % 2 == 1 and G <= 13:
                    rd = [('v', 9 + (G - 1) // 2)]
                if q == 3 and G % 2 == 1 and G <= 31:
                    rd = [('k', (G - 1) // 2)]
            if not opt['nods']:
                for kind, r in rd:
                    if kind == 'v':
                        sh.append(f'ds_read_b128 {ar(AV(r))}, v{V_DS} offset:{16384 + r*1024}')
                    else:
                        tb, ks = order[r]
                        sh.append(f'ds_read_b128 {ar(AK(tb,ks))}, v{V_DS} offset:{(tb*4+ks)*1024}')
            if q == 0 and G == 7:
                sh.append('s_waitcnt lgkmcnt(0)')
            if q == 1 and G == 15:
                sh.append('s_waitcnt lgkmcnt(6)')
            if q == 1 and G == 25:
                sh.append('s_waitcnt lgkmcnt(0)')
            if q == 3 and G == 32:
                sh.append('s_waitcnt lgkmcnt(8)')
            if q == 0 and G == 4:
                sh.append('s_mov_b32 m0, s36')
            if q == 2 and G == 4:
                sh.append('s_add_u32 m0, s36, 4096')
            if ((q == 0 and G in (5, 13)) or (q == 1 and G in (21, 29)) or (q == 2 and G in (5, 13, 21, 29))):
                if not opt['nodma']:
                    sh.append(f'buffer_load_dwordx4 v{V_L16 if dma_k < 4 else V_L16B}, s[8:11], s16 offen offset:{(dma_k & 3)*1024}{DS_} lds')
                dma_k += 1
            if q == 2:
                if G == 6:
                    sh.append('s_add_u32 s36, s17, s19')
                if G == 8:
                    sh.append('s_add_u32 s17, s17, 0x8000')
                if G == 10:
                    sh.append('s_and_b32 s17, s17, 0x1ffff')
                if G == 17:
                    fill.append(f'v_add_u32 v{V_DS}, s17, v{V_L16}')
                if G == 30:
                    sh.append('s_add_u32 s16, s16, 0x8000')
                if G == 12:
                    sh.append('s_add_u32 s18, s18, 1')
                if G == 32:
                    sh.append('s_waitcnt vmcnt(16)')
                if G == 33 and not opt['nobar']:
                    sh.append('s_barrier')
                if opt['traj']:
                    if G == 0:
                        sh.append('s_memtime s[94:95]')
                    if G == 2:
                        sh.append('s_memrealtime s[96:97]')
                    if G == 22:
                        sh.append('s_waitcnt lgkmcnt(0)')
                    if G == 25:
                        fill += ['v_mov_b32 v12, s94', 'v_mov_b32 v13, s96']
                    if G == 32:
                        fill += ['v_mov_b32 v14, s92']
                    if G == 33:
                        fill += ['buffer_store_dwordx2 v[12:13], v14, s[88:91], 0 offen', 's_add_u32 s92, s92, 8']
            if q == 3 and G == 30:
                sh.append('s_cmp_lt_u32 s18, 32')
            if q == 3 and G == 33:
                sh.append('s_cbranch_scc1 Lm_loop')
            loop(mf[G])
            for x in sh + fill:
                loop(x)
    head = Prog()
    head('.p2align 6')
    head('Lm_loop:')
    p.extend(head)
    p.extend(loop)
    loop_end = len(p.l)

    stamp(p, 7)
    for e in range(12, 16):
        p(f_exp(1, e))
    p('s_or_b32 s16, s3, s35')
    p('s_cbranch_scc1 Lm_noarrive')
    srd(p, 84, 80, 81, 256)
    p('s_and_b32 s16, s37, 0xc0')
    p('v_mov_b32 v6, 1')
    p('s_mov_b64 exec, 1')
    p('buffer_atomic_add v6, off, s[84:87], s16 sc0 sc1')
    p('s_mov_b64 exec, -1')
    p('Lm_noarrive:')
    p('v_and_b32 v12, 15, v0')
    p(f_cvt(1, 6))
    p(f_cvt(1, 7))
    p('v_lshrrev_b32 v13, 4, v0')
    p('v_lshlrev_b32 v12, 4, v12')
    tailm = pv_mfmas(3)
    tailm = tailm[16:] + tailm[:16]
    p('v_lshl_add_u32 v5, v13, 10, v12')
    p(f's_mov_b32 s17, {f32hex(2.0**opt["thr"])}')
    p('s_mov_b64 s[38:39], 0')
    ep = []

    def norm(q, pk):
        o = []
        for i in range(4):
            o.append(f'v_cmp_ngt_f32 vcc, s17, v{V_L+4*q+i}')
            o.append(f'v_rcp_f32 v{V_L+4*q+i}, v{V_L+4*q+i}')
            o.append('s_or_b64 s[38:39], s[38:39], vcc')
        o.append(f's_add_u32 s16, s32, {q*4096}')
        for i in range(4):
            if pk:
                if i % 2 == 0:
                    for db in range(8):
                        r = O(q, db) + i
                        o.append(f'v_pk_mul_f32 {vr(r,2)}, {vr(r,2)}, {vr(V_L+4*q+i,2)}')
            else:
                for db in range(8):
                    r = O(q, db) + i
                    o.append(f'v_mul_f32 v{r}, v{r}, v{V_L+4*q+i}')
            d = 96 + 4 * ((4 * q + i) % 8)
            for jj in range(4):
                o.append(f'v_cvt_pk_bf16_f32 v{d+jj}, v{O(q,2*jj)+i}, v{O(q,2*jj+1)+i}')
            o.append(f'buffer_store_dwordx4 {vr(d)}, v5, s[12:15], s16 offen offset:{i*256}' + ['', ' nt', ' sc1', ' sc0 sc1', ' sc1 nt'][opt['ont']])
        return o
    n0 = norm(0, False)
    k = 0
    for m in tailm:
        p(m)
        for _ in range(2):
            p(n0[k])
            k += 1
    for x in n0[k:]:
        p(x)
    for q in (1, 2, 3):
        for x in norm(q, True):
            p(x)
    stamp(p, 8)
    p('s_cmp_lg_u64 s[38:39], 0')
    p('s_cselect_b32 s17, 1, 0')
    p('v_mov_b32 v14, s17')
    p('s_lshl_b32 s18, s3, 2')
    p('s_add_u32 s18, s18, 0x20000')
    p('v_mov_b32 v15, s18')
    p('ds_write_b32 v15, v14')
    p('v_mov_b32 v14, 0x20000')
    p('s_waitcnt lgkmcnt(0)')
    p('s_barrier')
    p('ds_read_b128 v[16:19], v14')
    p('s_waitcnt lgkmcnt(0)')
    p('v_or_b32 v16, v16, v17')
    p('v_or3_b32 v16, v16, v18, v19')
    p('s_nop 0')
    p('v_readfirstlane_b32 s17, v16')
    p('s_cmp_gt_u32 s17, s35')
    p('s_cbranch_scc1 Lm_fallback')
    p('s_cmp_lg_u32 s3, 0')
    p('s_cbranch_scc1 Lm_noepoch')
    p('s_waitcnt vmcnt(16)')
    p('v_readfirstlane_b32 s17, v6')
    p('s_cmp_lg_u32 s17, 63')
    p('s_cbranch_scc1 Lm_noepoch')
    p('s_add_u32 s84, s82, 0x408000')
    p('s_addc_u32 s85, s83, 0')
    srd(p, 84, 84, 85, 512)
    p('s_and_b32 s16, s37, 0xc0')
    p('s_lshl_b32 s16, s16, 1')
    p('v_mov_b32 v12, s99')
    p('s_mov_b64 exec, 1')
    p('buffer_store_dword v12, off, s[84:87], s16')
    p('s_mov_b64 exec, -1')
    p('Lm_noepoch:')
    if opt['stamp']:
        p('s_waitcnt vmcnt(0)')
        stamp(p, 9)
        p('s_waitcnt lgkmcnt(0)')
        if opt['spin_b']:
            p(f's_cmp_lg_u32 s2, {opt["spin_wg"]}')
            p('s_cbranch_scc1 Lm_nospin')
            p('s_cmp_lg_u32 s3, 0')
            p('s_cbranch_scc1 Lm_nospin')
            p(f's_sub_u32 s16, s{40+2*opt["spin_b"]}, s{40+2*opt["spin_a"]}')
            p('s_lshl_b32 s16, s16, 2')
            p('s_min_u32 s16, s16, 50000')
            p('s_add_u32 s16, s16, 500')
            p('Lm_spin:')
            p('s_memrealtime s[94:95]')
            p('s_waitcnt lgkmcnt(0)')
            p('s_sub_u32 s17, s94, s58')
            p('s_cmp_lt_u32 s17, s16')
            p('s_cbranch_scc1 Lm_spin')
            p('Lm_nospin:')
        if opt['dbgst']:
            p(f's_cmp_lg_u32 s2, {opt["spin_wg"]}')
            p('s_cbranch_scc1 Lm_nodbg')
            p('s_cmp_lg_u32 s3, 0')
            p('s_cbranch_scc1 Lm_nodbg')
            srd(p, 84, 80, 81, 256)
            p('v_mov_b32 v12, 0')
            for k in range(1, 11):
                if k < 10:
                    p(f's_sub_u32 s16, s{40+2*k}, s40')
                else:
                    p('s_mov_b32 s16, s60')
                p('v_mov_b32 v13, s16')
                p(f'buffer_store_dword v13, v12, s[84:87], 0 offen offset:{4*k}')
            p('Lm_nodbg:')
        p('v_mov_b32 v12, s93')
        for k in range(11):
            p(f'v_mov_b32 v13, s{40+2*k}')
            p(f'buffer_store_dword v13, v12, s[88:91], 0 offen offset:{4*k}')
    p('Lm_done:')
    p('s_endpgm')
    epi_end = len(p.l)

    p('Lm_fallback:')
    p('s_mov_b32 s35, 1')
    p('s_waitcnt vmcnt(0) lgkmcnt(0)')
    p('s_lshl_b32 s17, s3, 10')
    p('s_mov_b32 m0, s17')
    p('s_mov_b32 s18, 0')
    p('Lm_fb_loop:')
    p('s_lshr_b32 s16, s18, 2')
    p('s_lshl_b32 s16, s16, 15')
    p('s_and_b32 s34, s18, 3')
    p('s_lshl_b32 s34, s34, 12')
    p('s_add_u32 s16, s16, s34')
    p('s_add_u32 s16, s16, s17')
    p('s_barrier')
    p(f'buffer_load_dwordx4 v{V_L16}, s[8:11], s16 offen lds')
    p('s_waitcnt vmcnt(0)')
    p('s_barrier')
    for ks in range(4):
        p(f'ds_read_b128 {ar(AK(0,ks))}, v{V_L16} offset:{ks*1024}')
    p('s_waitcnt lgkmcnt(0)')
    for q in range(4):
        for ks in range(4):
            d = vr(64 + 4 * q)
            p(f'{MF} {d}, {ar(AK(0,ks))}, {ar(AQ(q,ks))}, {d if ks else 0}')
    p('s_nop 7')
    rowmax_first_tile(p)
    p('s_add_u32 s18, s18, 1')
    p('s_cmp_lt_u32 s18, 128')
    p('s_cbranch_scc1 Lm_fb_loop')
    for x in init[:128] + init[144:212]:
        p(x)
    p('s_barrier')
    p('s_branch Lm_restart')

    p('Lm_selfmade:')
    p('s_mov_b32 s61, 1')
    p('s_and_b32 s62, s37, 0xc0')
    p('s_add_u32 s63, s62, 64')
    p('s_waitcnt vmcnt(0)')
    p('s_barrier')
    p('s_branch Lm_prep')

    seq = p.l[:loop_end] + p.l[pre_end:epi_end]
    probs = check_hazards(seq, 'main') + check_hazards(p.l[epi_end:], 'fb')
    for x in probs:
        print('HAZARD', x, file=sys.stderr)
    return p


def kd(name, nv, acc, ns):
    return f"""
.amdhsa_kernel {name}
  .amdhsa_next_free_vgpr {nv}
  .amdhsa_next_free_sgpr {ns}
  .amdhsa_accum_offset {acc}
  .amdhsa_group_segment_fixed_size 0
  .amdhsa_kernarg_size 80
  .amdhsa_user_sgpr_count 2
  .amdhsa_user_sgpr_kernarg_segment_ptr 1
  .amdhsa_system_sgpr_workgroup_id_x 1
  .amdhsa_float_denorm_mode_32 3
.end_amdhsa_kernel
"""


if __name__ == '__main__':
    pm = main()
    txt = HEADER + pm.text() + '.section .rodata,"a"\n.p2align 6' + kd(NAME + '_kernel', 448, 256, 102)
    open(sys.argv[1], 'w').write(txt)
```

```python
import sys, math, struct
from asmlib import Prog, I, check_hazards

NAME = 'standalone__kv_cache_quant_int4_int2_kv_with_per_channel_or_per_token_scales__prompt'
opt = dict(stamp=0, thr=48, nodma=0, nods=0, novalu=0, nobar=0, snake=1, traj=0, tmo=4096, forcetmo=0, forcefb=0,
           qnt=0, kvnt=0, ont=1, qa=0, qb=0, qc=2, nost=0, peel=1, ppg=3, eps=0, nfirst=6, voff=16, shift=2, kvsc=1, spin_a=0, spin_b=0, spin_wg=100,
           bord=1, cpf=1, mz=1, pd=2, pdelay=1)
for a in sys.argv[2:]:
    k, v = a.split('=')
    assert k in opt, k
    opt[k] = int(v, 0)


def f32hex(x):
    return '0x%08x' % struct.unpack('<I', struct.pack('<f', x))[0]


CSCALE = math.log2(math.e) / math.sqrt(128.0)
MF = 'v_mfma_f32_16x16x32_bf16'
LDS_LV, LDS_W, LDS_VOTE, LDS_SIZE = 0x20000, 0x22000, 0x26000, 0x26100
WS_FLAG, WS_EPOCH, WS_DIAG = 0x400000, 0x420000, 0x800000

HEADER = f"""; KIVI-style int4 KV-cache attention (prefill, GQA 32q/4kv, S=2048, D=128), gfx950.
; @launch grid=(256,1,1) block=(256,1,1) lds={LDS_SIZE}
.amdgcn_target "amdgcn-amd-amdhsa--gfx950"
.text
"""

S_WG, S_W = 2, 3
SRD_Q, SRD_KV, SRD_O, SRD_X, SRD_S, SRD_Z, SRD_F, SRD_D = 4, 8, 12, 20, 24, 28, 84, 88
S_GOFF, S_RING, S_IT, S_W8K = 16, 17, 18, 19
S_ROW, S_T0, S_T1, S_PASS, S_DMA, S_RB = 32, 33, 34, 35, 36, 37
S_BAD = 38
S_SELF, S_B0, S_B1 = 61, 62, 63
K_Q, K_QK, K_QV, K_KS, K_KZ, K_VS, K_VZ, K_OUT, K_DBG, K_WS = 64, 66, 68, 70, 72, 74, 76, 78, 80, 82
S_EPOCH, S_TAG, S_GAVE, S_BLK = 98, 99, 100, 101

V_L16, V_L16B, V_DS, V_DK, V_AC, V_ARR, V_AW = 1, 2, 3, 4, 5, 6, 7
V_KP = 31
V_M = 8
V_T = 12
V_C = 32
V_L = 48


def srd(p, s, lo, hi, nbytes):
    if lo != s:
        p(f's_mov_b32 s{s}, s{lo}')
    p(f's_and_b32 s{s+1}, s{hi}, 0xffff')
    p(f's_mov_b32 s{s+2}, {nbytes:#x}')
    p(f's_mov_b32 s{s+3}, 0x20000')


def sr(s):
    return f's[{s}:{s+3}]'


def unpack8(p, dst, src):
    for j in range(8):
        if j & 1:
            p(f'v_and_b32 v{dst+j}, 0xffff0000, v{src + (j >> 1)}')
        else:
            p(f'v_lshlrev_b32 v{dst+j}, 16, v{src + (j >> 1)}')


def S(b):
    return 64 + 16 * b


def O(q, db):
    return 128 + 32 * q + 4 * db


def AQ(q, ks):
    return 16 * q + 4 * ks


def AK(tb, ks):
    return 64 + 16 * tb + 4 * ks


def AV(x):
    return 128 + 4 * x


def koff(tb, ks):
    return (ks >> 1) * 8192 + (tb >> 1) * 4096 + (tb & 1) * 2048 + (ks & 1) * 1024


def vr(r, n=4):
    return f'v[{r}:{r+n-1}]'


def ar(r, n=4):
    return f'a[{r}:{r+n-1}]'


def qk_order():
    o = []
    for tb in range(4):
        kss = range(4) if (tb % 2 == 0 or not opt['snake']) else range(3, -1, -1)
        o += [(tb, ks) for ks in kss]
    return o


def qk_mfmas(q, seeded=False):
    out = []
    for x, (tb, ks) in enumerate(qk_order()):
        d = vr(S(q & 1) + 4 * tb)
        c = d if (x % 4 or seeded) else vr(V_C + 4 * tb)
        out.append(f'{MF} {d}, {ar(AK(tb,ks))}, {ar(AQ(q,ks))}, {c}')
    return out


def pv_mfmas(q):
    out = []
    for x in range(18):
        s = x & 1
        d = vr(O(q, x >> 1)) if x < 16 else vr(V_L + 4 * q)
        out.append(f'{MF} {d}, {ar(AV(x))}, {vr(S(q & 1)+8*s)}, {d}')
    return out


def f_exp(b, e):
    return f'v_exp_f32 v{S(b)+e}, v{S(b)+e}'


def f_cvt(b, jj):
    base = S(b) + 8 * (jj >> 2)
    j = jj & 3
    return f'v_cvt_pk_bf16_f32 v{base+j}, v{base+2*j}, v{base+2*j+1}'


def sm_fill(q, G):
    b = q & 1
    if G % 2 == 0 and G <= 30:
        return [f_exp(b, (G - 8) // 2)] if G >= 8 else [f_exp(1 - b, 12 + G // 2)]
    if G % 4 == 3:
        return [f_cvt(b, (G - 11) // 4)] if G >= 11 else [f_cvt(1 - b, 6 + G // 4)]
    return []


def rd_k(tb, ks):
    return f'ds_read_b128 {ar(AK(tb,ks))}, v{V_DK} offset:{koff(tb,ks)}'


def rd_c(tb):
    return f'ds_read_b128 {vr(V_C+4*tb)}, v{V_AC} offset:{tb*64}'


def rd_v(x):
    if x < 16:
        return f'ds_read_b128 {ar(AV(x))}, v{V_DS} offset:{16384 + x*1024}'
    return f'ds_read_b128 {ar(AV(x))}, v{V_AW} offset:{(x-16)*256}'


def stamp(p, idx):
    if opt['stamp']:
        p(f's_memrealtime s[{40 + 2*idx}:{41 + 2*idx}]')


QN = ' nt' if opt['qnt'] else ''
KN = ' nt' if opt['kvnt'] else ''
DSC = ['', ' sc1', ' nt', ' sc1 nt', ' sc0 sc1'][opt['kvsc']]
OSC = ['', ' nt', ' sc1', ' sc0 sc1', ' sc1 nt'][opt['ont']]

INIT_A = [f'v_mov_b32 v{r}, 0' for r in range(128, 256)] + [f'v_accvgpr_write_b32 a{r}, 0' for r in range(128, 200)]
if opt['mz']:
    INIT_A = [f'v_mov_b32 v{8+r}, 0' for r in range(4)] + ['s_nop 1']
    INIT_A += [f'v_mfma_f32_32x32x16_bf16 v[{r}:{r+15}], v[8:11], v[8:11], 0' for r in range(128, 256, 16)]
    INIT_A += [f'v_mfma_f32_32x32x16_bf16 a[{r}:{r+15}], v[8:11], v[8:11], 0' for r in range(128, 208, 16)]
INIT_P = [f'v_mov_b32 v{S(1)+r}, 0' for r in range(12)] + [f'v_mov_b32 v{S(1)+r}, 0xff800000' for r in range(12, 16)]
INIT_L = [f'v_mov_b32 v{V_L+r}, 0' for r in range(16)]


V_QS = 112


def qload(p, q0, q1):
    for q in range(q0, q1):
        p(f's_add_u32 m0, s{S_W8K}, {0x10000 + (q >> 1) * 0x8000 + (q & 1) * 4096}')
        p(f's_add_u32 s{S_T1}, s{S_ROW}, {q*4096}')
        for x in range(4):
            p(f'buffer_load_dwordx4 v{V_QS+x}, {sr(SRD_Q)}, s{S_T1} offen offset:{x*1024}{QN} lds')


def qfrags(p):
    p('v_and_b32 v12, 15, v0')
    p('v_lshrrev_b32 v13, 4, v0')
    p('v_xor_b32 v13, v13, v12')
    p('v_lshlrev_b32 v12, 8, v12')
    p('v_lshl_add_u32 v12, v13, 4, v12')
    p(f's_add_u32 s{S_T1}, s{S_W8K}, 0x10000')
    p(f'v_add_u32 v12, s{S_T1}, v12')
    for ks in range(1, 4):
        p(f'v_xor_b32 v{12+ks}, {ks*64}, v12')
    return [f'ds_read_b128 {ar(AQ(q,ks))}, v{12+ks} offset:{(q >> 1) * 0x8000 + (q & 1) * 4096}' for q in range(4) for ks in range(4)]


def dma_stage(p, n):
    p(f's_add_u32 m0, s{S_W8K}, {n*32768}')
    p('s_nop 0')
    for k in range(4):
        p(f'buffer_load_dwordx4 v{V_L16}, {sr(SRD_KV)}, s{S_GOFF} offen offset:{k*1024}{DSC} lds')
    p(f's_add_u32 m0, s{S_W8K}, {n*32768 + 4096}')
    p('s_nop 0')
    for k in range(4):
        p(f'buffer_load_dwordx4 v{V_L16B}, {sr(SRD_KV)}, s{S_GOFF} offen offset:{k*1024}{DSC} lds')
    p(f's_add_u32 s{S_GOFF}, s{S_GOFF}, 0x8000')


def aux_loads(p):
    srd(p, SRD_S, K_VS, K_VS + 1, 16384)
    srd(p, SRD_Z, K_VZ, K_VZ + 1, 16384)
    p('v_lshrrev_b32 v17, 2, v0')
    p('v_and_b32 v18, 3, v0')
    p('v_lshlrev_b32 v19, 3, v18')
    p('v_lshl_add_u32 v19, v17, 6, v19')
    p(f's_and_b32 s{S_T0}, s{S_RB}, 0xc0')
    p(f's_lshl_b32 s{S_T0}, s{S_T0}, 6')
    p(f's_lshl_b32 s{S_T1}, s{S_W}, 10')
    p(f's_add_u32 s{S_T0}, s{S_T0}, s{S_T1}')
    p(f'buffer_load_dwordx2 v[120:121], v19, {sr(SRD_S)}, s{S_T0} offen')
    p(f'buffer_load_dwordx2 v[122:123], v19, {sr(SRD_S)}, s{S_T0} offen offset:32')
    p(f'buffer_load_dwordx2 v[124:125], v19, {sr(SRD_Z)}, s{S_T0} offen')
    p(f'buffer_load_dwordx2 v[126:127], v19, {sr(SRD_Z)}, s{S_T0} offen offset:32')


def aux_compute(p):
    A, B, C_, D = 32, 40, 48, 56
    unpack8(p, A, 120)
    unpack8(p, B, 124)
    p(f's_mov_b32 s{S_T0}, 0x007fffff')
    for j in range(8):
        p(f'v_and_b32 v{C_+j}, 0xff800000, v{A+j}')
        p(f'v_add_f32 v{B+j}, {f32hex(float(opt["voff"]))}, v{B+j}')
        p(f'v_and_or_b32 v{A+j}, v{A+j}, s{S_T0}, 1.0')
    for j in range(8):
        p(f'v_mul_f32 v{B+j}, v{B+j}, v{C_+j}')
        p(f'v_log_f32 v{D+j}, v{A+j}')
        p(f'v_rcp_f32 v{A+j}, v{A+j}')
    for j in range(8):
        p(f'v_add_f32 v{D+j}, {f32hex(-float(opt["shift"]))}, v{D+j}')
    p('v_lshrrev_b32 v17, 2, v0')
    p('v_and_b32 v18, 3, v0')
    p(f's_lshl_b32 s{S_T0}, s{S_W}, 11')
    p(f's_add_u32 s{S_T0}, s{S_T0}, {LDS_LV}')
    p('v_lshlrev_b32 v19, 4, v18')
    p('v_lshl_add_u32 v19, v17, 7, v19')
    p(f'v_add_u32 v19, s{S_T0}, v19')
    p(f'ds_write_b128 v19, {vr(D)}')
    p(f'ds_write_b128 v19, {vr(D+4)} offset:64')
    p(f's_lshl_b32 s{S_T0}, s{S_W}, 12')
    p(f's_add_u32 s{S_T0}, s{S_T0}, {LDS_W}')
    p(f'v_lshl_add_u32 v19, v0, 6, s{S_T0}')
    for row, src in ((0, A), (2, B)):
        hi, lo = 20, 24
        for jj in range(4):
            p(f'v_cvt_pk_bf16_f32 v{hi+jj}, v{src+2*jj}, v{src+2*jj+1}')
        unpack8(p, C_, hi)
        p(f'ds_write_b128 v19, {vr(hi)} offset:{row*16}')
        for j in range(8):
            p(f'v_sub_f32 v{C_+j}, v{src+j}, v{C_+j}')
        for jj in range(4):
            p(f'v_cvt_pk_bf16_f32 v{lo+jj}, v{C_+2*jj}, v{C_+2*jj+1}')
        p(f'ds_write_b128 v19, {vr(lo)} offset:{row*16+16}')
        if row == 0:
            p('s_waitcnt lgkmcnt(0)')


def main():
    p = Prog()
    kn = NAME + '_kernel'
    qa, qb, qc, pd = opt['qa'], opt['qb'], opt['qc'], opt['pd']
    p(f'.globl {kn}\n.p2align 8\n.type {kn},@function\n{kn}:')
    p('s_cmp_ge_u32 s2, 256')
    p('s_cbranch_scc1 Lm_done')
    stamp(p, 0)
    p('s_load_dwordx16 s[64:79], s[0:1], 0')
    p('s_load_dwordx4 s[80:83], s[0:1], 64')
    if opt['cpf']:
        p('s_getpc_b64 s[4:5]')
        p('v_lshlrev_b32 v12, 6, v0')
        p(f'v_min_u32 v12, Lm_codeend-{kn}-64, v12')
        p('global_load_dword v27, v12, s[4:5]')
    p('v_lshrrev_b32 v12, 6, v0')
    p('v_and_b32 v0, 63, v0')
    p(f'v_readfirstlane_b32 s{S_W}, v12')
    p(f'v_lshlrev_b32 v{V_L16}, 4, v0')
    p(f'v_add_u32 v{V_L16B}, 4096, v{V_L16}')
    if opt['bord']:
        p(f's_and_b32 s{S_RB}, s2, 6')
        p(f's_lshl_b32 s{S_RB}, s{S_RB}, 5')
        p(f's_lshr_b32 s{S_T0}, s2, 3')
        p(f's_lshl_b32 s{S_T0}, s{S_T0}, 1')
        p(f's_add_u32 s{S_RB}, s{S_RB}, s{S_T0}')
        p(f's_and_b32 s{S_T0}, s2, 1')
        p(f's_add_u32 s{S_RB}, s{S_RB}, s{S_T0}')
    else:
        p(f's_and_b32 s{S_RB}, s2, 7')
        p(f's_lshl_b32 s{S_RB}, s{S_RB}, 5')
        p(f's_lshr_b32 s{S_T0}, s2, 3')
        p(f's_add_u32 s{S_RB}, s{S_RB}, s{S_T0}')
    p(f's_mov_b32 s{S_B0}, s{S_RB}')
    p(f's_add_u32 s{S_B1}, s{S_RB}, 1')
    p(f's_lshl_b32 s{S_ROW}, s{S_RB}, 16')
    p(f's_lshl_b32 s{S_T1}, s{S_W}, 14')
    p(f's_add_u32 s{S_ROW}, s{S_ROW}, s{S_T1}')
    p(f's_lshl_b32 s{S_W8K}, s{S_W}, 13')
    p(f's_mov_b32 s{S_PASS}, 0')
    p(f's_mov_b32 s{S_SELF}, 0')
    p(f's_mov_b32 s{S_GAVE}, 0')
    p('v_bfe_u32 v12, v0, 2, 2')
    p('v_lshlrev_b32 v12, 1, v12')
    p('v_mov_b32 v13, 0x78')
    p('v_bfe_u32 v12, v13, v12, 2')
    p('v_lshrrev_b32 v14, 4, v0')
    p('v_xor_b32 v12, v12, v14')
    p('v_and_b32 v15, 15, v0')
    p('v_lshl_add_u32 v12, v15, 2, v12')
    p(f'v_lshlrev_b32 v{V_KP}, 4, v12')
    p(f's_and_b32 s{S_T1}, s{S_RB}, 0xc0')
    p(f's_lshl_b32 s{S_T0}, s{S_T1}, 14')
    p(f's_lshl_b32 s{S_T1}, s{S_T1}, 1')
    p(f's_add_u32 s{S_T1}, s{S_T1}, {WS_EPOCH}')
    p('Lm_prep:')
    p('v_lshrrev_b32 v14, 4, v0')
    p('v_and_b32 v15, 15, v0')
    p('v_xor_b32 v12, v15, v14')
    p('v_lshlrev_b32 v12, 4, v12')
    p(f'v_lshl_add_u32 v{V_QS}, v14, 8, v12')
    for x in range(1, 4):
        p(f'v_xor_b32 v{V_QS+x}, {x*64}, v{V_QS}')
    p(f's_lshl_b32 s16, s{S_B0}, 14')
    p(f's_cmp_ge_u32 s{S_W}, 2')
    p('s_cbranch_scc1 Lm_offv')
    p('v_lshlrev_b32 v12, 1, v14')
    p('v_mov_b32 v13, 0x78')
    p('v_bfe_u32 v12, v13, v12, 2')
    p('v_and_b32 v13, 3, v0')
    p('v_xor_b32 v12, v12, v13')
    p('v_lshlrev_b32 v17, 4, v12')
    p('v_lshrrev_b32 v13, 2, v0')
    p('v_lshlrev_b32 v13, 9, v13')
    p('v_lshl_add_u32 v16, v12, 5, v13')
    p(f's_lshl_b32 s17, s{S_W}, 8')
    p('s_add_u32 s16, s16, s17')
    p('s_movk_i32 s94, 128')
    p('s_movk_i32 s95, 16')
    p(f's_lshr_b32 s96, s{S_B0}, 2')
    p('s_lshl_b32 s96, s96, 1')
    p(f's_add_u32 s96, s96, s{S_W}')
    p('s_lshl_b32 s96, s96, 7')
    p('s_add_u32 s97, s96, 64')
    p('s_branch Lm_offdone')
    p('Lm_offv:')
    p('v_lshlrev_b32 v17, 3, v14')
    p('v_bfe_u32 v12, v0, 2, 2')
    p('v_and_b32 v13, 3, v0')
    p('v_lshlrev_b32 v13, 4, v13')
    p('v_lshl_add_u32 v13, v12, 7, v13')
    p('v_lshl_add_u32 v16, v14, 11, v13')
    p(f's_and_b32 s17, s{S_W}, 1')
    p('s_lshl_b32 s17, s17, 6')
    p('s_add_u32 s16, s16, s17')
    p('s_movk_i32 s94, 1024')
    p('s_movk_i32 s95, 512')
    p(f's_lshl_b32 s96, s{S_B0}, 6')
    p('s_add_u32 s97, s96, 32')
    p('Lm_offdone:')
    for r in (SRD_X, SRD_S, SRD_Z):
        p(f's_mov_b32 s{r+2}, {(4 << 20) if r == SRD_X else 16384:#x}')
        p(f's_mov_b32 s{r+3}, 0x20000')
    p(f's_cmp_ge_u32 s{S_W}, 2')
    p('s_waitcnt lgkmcnt(0)')
    stamp(p, 1)
    p(f's_cselect_b64 s[{SRD_S}:{SRD_S+1}], s[{K_VS}:{K_VS+1}], s[{K_KS}:{K_KS+1}]')
    p(f's_cselect_b64 s[{SRD_Z}:{SRD_Z+1}], s[{K_VZ}:{K_VZ+1}], s[{K_KZ}:{K_KZ+1}]')
    p(f's_cselect_b64 s[{SRD_X}:{SRD_X+1}], s[{K_QV}:{K_QV+1}], s[{K_QK}:{K_QK+1}]')
    for r in (SRD_S, SRD_Z, SRD_X):
        p(f's_and_b32 s{r+1}, s{r+1}, 0xffff')
    p(f'buffer_load_dwordx4 v[96:99], v17, {sr(SRD_S)}, s96 offen')
    p(f'buffer_load_dwordx4 v[100:103], v17, {sr(SRD_S)}, s97 offen')
    p(f'buffer_load_dwordx4 v[104:107], v17, {sr(SRD_Z)}, s96 offen')
    p(f'buffer_load_dwordx4 v[108:111], v17, {sr(SRD_Z)}, s97 offen')
    for a_ in range(2):
        p(f'buffer_load_dwordx4 v[{64+16*a_}:{67+16*a_}], v16, {sr(SRD_X)}, s16 offen{KN}')
        p('s_add_u32 s17, s16, s95')
        p(f'buffer_load_dwordx4 v[{68+16*a_}:{71+16*a_}], v16, {sr(SRD_X)}, s17 offen{KN}')
        p('s_add_u32 s17, s16, s94')
        p(f'buffer_load_dwordx4 v[{72+16*a_}:{75+16*a_}], v16, {sr(SRD_X)}, s17 offen{KN}')
        p('s_add_u32 s17, s17, s95')
        p(f'buffer_load_dwordx4 v[{76+16*a_}:{79+16*a_}], v16, {sr(SRD_X)}, s17 offen{KN}')
        if a_ == 0:
            p('s_add_u32 s16, s16, 8192')
    p(f's_cmp_lg_u32 s{S_SELF}, 0')
    p('s_cbranch_scc1 Lm_havekv')
    p(f's_load_dword s{S_EPOCH}, s[{K_WS}:{K_WS+1}], s{S_T1}')
    p(f's_add_u32 s{SRD_KV}, s{K_WS}, s{S_T0}')
    p(f's_addc_u32 s{SRD_KV+1}, s{K_WS+1}, 0')
    srd(p, SRD_KV, SRD_KV, SRD_KV + 1, 1 << 20)
    p('Lm_havekv:')
    aux_loads(p)
    srd(p, SRD_Q, K_Q, K_Q + 1, 16 << 20)
    qload(p, 0, qa)
    NX = 4 + 4 * qa
    p(f's_and_b32 s16, s{S_B0}, 63')
    p('s_lshr_b32 s17, s16, 1')
    p('s_lshl_b32 s17, s17, 15')
    p(f's_add_u32 s17, s17, s{S_W8K}')
    p('s_and_b32 s16, s16, 1')
    for x in INIT_A:
        p(x)
    p(f's_cmp_ge_u32 s{S_W}, 2')
    p('s_cbranch_scc1 Lm_prepv')
    p('s_lshl_b32 s16, s16, 12')
    p('s_add_u32 s16, s16, s17')
    p(f's_mov_b32 s17, {f32hex(CSCALE)}')
    p(f's_waitcnt vmcnt({8 + NX})')
    for ch in range(2):
        unpack8(p, 32 + 8 * ch, 96 + 4 * ch)
        unpack8(p, 48 + 8 * ch, 104 + 4 * ch)
    for j in range(16):
        p(f'v_mul_f32 v{32+j}, s17, v{32+j}')
    for j in range(16):
        p(f'v_mul_f32 v{48+j}, -v{48+j}, v{32+j}')
    for ps in range(4):
        ch = ps & 1
        p(f's_waitcnt vmcnt({6 - ps + NX})')
        if ps == 3:
            stamp(p, 2)
        r = 64 + ps * 8
        for j in range(8):
            p(f'v_cvt_f32_i32 v{r+j}, v{r+j}')
        for j in range(0, 8, 2):
            p(f'v_pk_fma_f32 {vr(r+j,2)}, {vr(r+j,2)}, {vr(32+8*ch+j,2)}, {vr(48+8*ch+j,2)}')
        for j in range(4):
            p(f'v_cvt_pk_bf16_f32 v{r+j}, v{r+2*j}, v{r+2*j+1}')
        p(f'buffer_store_dwordx4 v[{r}:{r+3}], v{V_L16}, {sr(SRD_KV)}, s16 offen offset:{ps * 1024} sc1')
    p('s_branch Lm_prepdone')
    p('Lm_prepv:')
    p('s_lshl_b32 s16, s16, 10')
    p('s_add_u32 s16, s16, s17')
    p(f's_waitcnt vmcnt({8 + NX})')
    for j in range(8):
        src = 96 + 4 * (j >> 2) + ((j & 3) >> 1)
        if j & 1:
            p(f'v_and_b32 v{32+j}, 0xff800000, v{src}')
        else:
            p(f'v_lshlrev_b32 v{32+j}, 16, v{src}')
            p(f'v_and_b32 v{32+j}, 0xff800000, v{32+j}')
    for j in range(8):
        p(f'v_mul_f32 v{40+j}, {f32hex(float(opt["voff"]))}, v{32+j}')
    for j in range(8):
        p(f's_waitcnt vmcnt({7 - j + NX})')
        if j == 7:
            stamp(p, 2)
        r = 64 + 4 * j
        for db in range(4):
            p(f'v_cvt_f32_i32 v{r+db}, v{r+db}')
        je = j & ~1
        sel = 'op_sel:[0,1,1] op_sel_hi:[1,1,1]' if j & 1 else 'op_sel:[0,0,0] op_sel_hi:[1,0,0]'
        for db in range(0, 4, 2):
            p(f'v_pk_fma_f32 {vr(r+db,2)}, {vr(r+db,2)}, {vr(32+je,2)}, {vr(40+je,2)} {sel}')
        if j & 1:
            for db in range(4):
                p(f'v_cvt_pk_bf16_f32 v{96 + 4*db + (j >> 1)}, v{r - 4 + db}, v{r + db}')
    for db in range(4):
        p(f'buffer_store_dwordx4 v[{96+4*db}:{96+4*db+3}], v{V_L16B if db & 2 else V_L16}, {sr(SRD_KV)}, s16 offen offset:{(db & 1) * 2048} sc1')
    p('Lm_prepdone:')
    p(f's_add_u32 s{S_B0}, s{S_B0}, 1')
    p(f's_cmp_lt_u32 s{S_B0}, s{S_B1}')
    p('s_cbranch_scc1 Lm_prep')
    qload(p, qa, qb)
    srd(p, SRD_O, K_OUT, K_OUT + 1, 16 << 20)
    p(f's_and_b32 s16, s{S_RB}, 0xc0')
    p('s_lshl_b32 s16, s16, 7')
    p(f's_add_u32 s16, s16, {WS_FLAG}')
    p(f's_add_u32 s{SRD_F}, s{K_WS}, s16')
    p(f's_addc_u32 s{SRD_F+1}, s{K_WS+1}, 0')
    srd(p, SRD_F, SRD_F, SRD_F + 1, 8192)
    p('v_lshlrev_b32 v13, 7, v0')
    p(f's_and_b32 s16, s{S_RB}, 63')
    p('s_lshl_b32 s16, s16, 7')
    p(f's_mov_b32 s{S_IT}, 0')
    p(f's_waitcnt vmcnt({4*(qb - qa)}) lgkmcnt(0)')
    stamp(p, 3)
    p(f's_mul_i32 s{S_TAG}, s{S_EPOCH}, 0x9e3779b1')
    p(f's_add_u32 s{S_TAG}, s{S_TAG}, 0x85ebca6b')
    p(f'v_mov_b32 v12, s{S_TAG}')
    p(f's_or_b32 s17, s{S_W}, s{S_SELF}')
    p('s_barrier')
    p('s_cbranch_scc1 Lm_nopub')
    p('s_mov_b64 exec, 1')
    p(f'buffer_store_dword v12, off, {sr(SRD_F)}, s16 sc1')
    p('s_mov_b64 exec, -1')
    p('Lm_nopub:')
    qload(p, qb, qc)
    aux_compute(p)
    p(f'v_mov_b32 v14, {LDS_VOTE + 16}')
    p(f's_cmp_lg_u32 s{S_W}, 0')
    p('s_cbranch_scc1 Lm_nopoll')
    p(f's_cmp_lg_u32 s{S_SELF}, 0')
    p('s_cbranch_scc1 Lm_got')
    p('Lm_poll:')
    p(f'buffer_load_dword v15, v13, {sr(SRD_F)}, 0 offen sc1')
    p(f's_add_u32 s{S_IT}, s{S_IT}, 1')
    p('s_waitcnt vmcnt(0)')
    p('v_cmp_ne_u32 vcc, v15, v12')
    if opt['forcetmo']:
        p('s_mov_b64 vcc, -1')
    p('s_cbranch_vccz Lm_got')
    p(f's_cmp_lt_u32 s{S_IT}, {opt["tmo"]}')
    p('s_cbranch_scc1 Lm_poll')
    p(f's_mov_b32 s{S_GAVE}, 2')
    p(f's_mov_b32 s{SRD_KV+2}, 0')
    p('Lm_got:')
    p(f'v_mov_b32 v12, s{SRD_KV+2}')
    p('ds_write_b32 v14, v12')
    stamp(p, 4)
    p('s_waitcnt lgkmcnt(0)')
    p('Lm_nopoll:')
    p('s_barrier')
    p('ds_read_b32 v12, v14')
    p(f's_mov_b32 s{S_GOFF}, s{S_W8K}')
    p('s_waitcnt lgkmcnt(0)')
    p(f'v_readfirstlane_b32 s{SRD_KV+2}, v12')
    p('s_nop 2')
    dma_stage(p, 0)
    qload(p, qc, 4)
    dma_stage(p, 1)
    qr = qfrags(p)
    p(f's_waitcnt vmcnt({16 + 4*(4 - qc)})')
    for x in qr[:4*qc]:
        p(x)
    p('Lm_all:')
    if opt['stamp']:
        p(f's_mov_b32 s60, s{S_IT}')
    if opt['traj'] or opt['stamp']:
        p(f's_add_u32 s88, s{K_WS}, {WS_DIAG}')
        p(f's_addc_u32 s89, s{K_WS+1}, 0')
        srd(p, 88, 88, 89, 1 << 20)
        p('s_lshl_b32 s92, s2, 2')
        p('s_add_u32 s92, s92, s3')
        p('s_lshl_b32 s92, s92, 9')
        p('s_add_u32 s93, s92, 256')
    for x in INIT_L + INIT_P:
        p(x)
    assert pd == 2
    VW, VR_, VS_, X = 22, 26, V_QS, 96
    p('v_and_b32 v17, 15, v0')
    p('v_lshrrev_b32 v18, 4, v0')
    p('v_lshlrev_b32 v18, 2, v18')
    p('v_xor_b32 v18, v18, v17')
    p('v_lshlrev_b32 v17, 8, v17')
    p(f'v_lshl_add_u32 v{VW}, v18, 4, v17')
    p(f's_add_u32 s{S_T1}, s{S_W8K}, 0x10000')
    p(f'v_add_u32 v{VW}, s{S_T1}, v{VW}')
    for r in range(1, 4):
        p(f'v_xor_b32 v{VW+r}, {r*16}, v{VW}')
    p(f'v_add_u32 v{VR_}, s{S_T1}, v{V_L16}')
    p(f'v_mov_b32 v{V_DS}, v{V_L16}')
    p(f'v_mov_b32 v{V_DK}, v{V_KP}')
    p('v_lshrrev_b32 v17, 4, v0')
    p('v_and_b32 v18, 3, v0')
    p(f'v_lshlrev_b32 v{V_AC}, 4, v17')
    p(f'v_add_u32 v{V_AC}, {LDS_LV}, v{V_AC}')
    p('v_lshl_add_u32 v18, v17, 2, v18')
    p(f'v_lshlrev_b32 v{V_AW}, 4, v18')
    p(f'v_add_u32 v{V_AW}, {LDS_W}, v{V_AW}')
    p(f's_mov_b32 s{S_RING}, 0')
    p(f's_add_u32 s{S_DMA}, s{S_W8K}, {pd * 0x8000}')
    p(f's_mov_b32 s{S_IT}, 0')
    p(f's_waitcnt vmcnt({8 + 4*(4 - qc)}) lgkmcnt(0)')
    p('s_barrier')
    stamp(p, 5)
    order = qk_order()
    for tb in range(4):
        p(rd_c(tb))
        for x in range(4):
            p(rd_k(*order[4 * tb + x]))
    if qc < 4:
        p('s_waitcnt vmcnt(8)')
        for x in qr[4*qc:]:
            p(x)
    if pd == 3:
        p('s_waitcnt lgkmcnt(0)')
        dma_stage(p, 2)
    stamp(p, 6)
    p('s_waitcnt lgkmcnt(%d)' % (0 if (opt['stamp'] or qc < 4) else 10))
    pre_end = len(p.l)

    peel = opt['peel']

    def dma(k):
        return f'buffer_load_dwordx4 v{V_L16 if k < 4 else V_L16B}, {sr(SRD_KV)}, s{S_GOFF} offen offset:{(k & 3)*1024}{DSC} lds'
    DMA_AT = {(0, 5): 0, (0, 13): 1, (1, 21): 2, (1, 29): 3, (2, 5): 4, (2, 13): 5, (2, 21): 6, (2, 29): 7}

    def gap(q, G):
        sh = []
        fill = [] if opt['novalu'] else sm_fill(q, G)
        rd = []
        if q == 0 and G >= 17 and G % 4 == 1:
            rd = [rd_v(2 * ((G - 17) // 4) + k) for k in range(2)]
        if q == 1 and G in (1, 5, 9, 13):
            rd = [rd_v(10 + 2 * ((G - 1) // 4) + k) for k in range(2)]
        if q == 3 and G < 32:
            tb, gg = G // 8, G % 8
            if gg == 1:
                rd = [rd_c(tb), rd_k(*order[4 * tb])]
            if gg == 3:
                rd = [rd_k(*order[4 * tb + 1])]
            if gg == 5:
                rd = [rd_k(*order[4 * tb + 2]), rd_k(*order[4 * tb + 3])]
        if not opt['nods']:
            sh += rd
        if q == 0 and G == 7:
            sh.append('s_waitcnt lgkmcnt(0)')
        if q == 1 and G == 15:
            sh.append('s_waitcnt lgkmcnt(8)')
        if q == 1 and G == 25:
            sh.append('s_waitcnt lgkmcnt(0)')
        if q == 3 and G == 32:
            sh.append('s_waitcnt lgkmcnt(10)')
        if q == 0 and G == 4:
            sh.append(f's_mov_b32 m0, s{S_DMA}')
        if q == 2 and G == 4:
            sh.append(f's_add_u32 m0, s{S_DMA}, 4096')
        if (q, G) in DMA_AT and not opt['nodma']:
            sh.append(dma(DMA_AT[(q, G)]))
        if q == 1 and peel:
            if G == 30:
                sh.append(f's_cmp_eq_u32 s{S_IT}, 31')
            if G == 33:
                sh.append('s_cbranch_scc1 Lm_last')
        if q == 2:
            if G == 1:
                fill.append(f'v_add_u32 v{V_AC}, 256, v{V_AC}')
            if G == 9:
                fill.append(f'v_add_u32 v{V_AW}, 512, v{V_AW}')
            if G == 6 and pd == 3:
                sh.append(f's_add_u32 s{S_DMA}, s{S_RING}, s{S_W8K}')
            if G == 14 and pd == 2:
                sh.append(f's_xor_b32 s{S_DMA}, s{S_RING}, 0x10000')
            if G == 16 and pd == 2:
                sh.append(f's_add_u32 s{S_DMA}, s{S_DMA}, s{S_W8K}')
            if G == 25:
                fill.append(f'v_add_u32 v{V_DK}, s{S_RING}, v{V_KP}')
            if G == 8:
                sh.append(f's_add_u32 s{S_RING}, s{S_RING}, 0x8000')
            if G == 10:
                sh.append(f's_and_b32 s{S_RING}, s{S_RING}, 0x1ffff')
            if G == 17:
                fill.append(f'v_add_u32 v{V_DS}, s{S_RING}, v{V_L16}')
            if G == 30:
                sh.append(f's_add_u32 s{S_GOFF}, s{S_GOFF}, 0x8000')
            if G == 12:
                sh.append(f's_add_u32 s{S_IT}, s{S_IT}, 1')
            if G == 32:
                sh.append(f's_waitcnt vmcnt({8 * (pd - 1)})')
            if G == 33 and not opt['nobar']:
                sh.append('s_barrier')
            if opt['traj']:
                if G == 0:
                    sh.append('s_memtime s[94:95]')
                if G == 2:
                    sh.append('s_memrealtime s[96:97]')
                if G == 22:
                    sh.append('s_waitcnt lgkmcnt(0)')
                if G == 25:
                    fill += ['v_mov_b32 v12, s94']
                if G == 32:
                    fill += ['v_mov_b32 v14, s92', 'v_mov_b32 v13, s96']
                if G == 33:
                    fill += ['buffer_store_dwordx2 v[12:13], v14, s[88:91], 0 offen', 's_add_u32 s92, s92, 8']
        if q == 3:
            if peel:
                if G == 33:
                    sh.append('s_branch Lm_loop')
            else:
                if G == 30:
                    sh.append(f's_cmp_lt_u32 s{S_IT}, 32')
                if G == 33:
                    sh.append('s_cbranch_scc1 Lm_loop')
        return sh, fill

    p('.p2align 6')
    p('Lm_loop:')
    mid = None
    for q in range(4):
        if q == 2:
            mid = len(p.l)
        mf = qk_mfmas(q) + pv_mfmas((q - 1) & 3)
        for G in range(34):
            sh, fill = gap(q, G)
            p(mf[G])
            for x in sh + fill:
                p(x)
    loop_end = len(p.l)

    def setup():
        return [f's_mov_b32 s20, {f32hex(2.0**opt["thr"])}', f's_mov_b32 s21, {f32hex(2.0**-opt["thr"])}',
                f's_mov_b64 s[{S_BAD}:{S_BAD+1}], 0']

    def norm(q, pk):
        o = []
        L = V_L + 4 * q
        lo = (q & 1) * 4096
        o.append(f'v_add_f32 v{L}, v{L}, v{L+1}')
        o.append(f'v_add_f32 v{L+2}, v{L+2}, v{L+3}')
        if opt['eps']:
            o[-2] = f'v_mul_f32 v{L}, {f32hex(1.0/(1.0 + opt["eps"]*1e-3))}, v{L}'
        o.append(f'v_cmp_ngt_f32 vcc, s20, v{L}')
        o.append(f's_or_b64 s[{S_BAD}:{S_BAD+1}], s[{S_BAD}:{S_BAD+1}], vcc')
        o.append(f'v_cmp_nlt_f32 vcc, s21, v{L}')
        o.append(f'v_rcp_f32 v{L}, v{L}')
        o.append(f's_or_b64 s[{S_BAD}:{S_BAD+1}], s[{S_BAD}:{S_BAD+1}], vcc')
        o.append(f'v_mul_f32 v{L+2}, -v{L+2}, v{L}')
        for wv in range(2):
            for h in range(2):
                for db in range(4 * wv, 4 * wv + 4):
                    r = O(q, db) + 2 * h
                    if pk:
                        o.append(f'v_pk_fma_f32 {vr(r,2)}, {vr(r,2)}, {vr(L,2)}, {vr(L+2,2)} op_sel:[0,0,0] op_sel_hi:[1,0,0]')
                    else:
                        o.append(f'v_fma_f32 v{r}, v{r}, v{L}, v{L+2}')
                        o.append(f'v_fma_f32 v{r+1}, v{r+1}, v{L}, v{L+2}')
                c = 2 * wv + h
                for w in range(4):
                    db, i = 4 * wv + 2 * (w & 1), 2 * h + (w >> 1)
                    o.append(f'v_cvt_pk_bf16_f32 v{X + 4*c + w}, v{O(q,db)+i}, v{O(q,db+1)+i}')
                o.append(f'ds_write_b128 v{VW+c}, {vr(X+4*c)} offset:{lo}')
        for x in range(4):
            o.append(f'ds_read_b128 {vr(O(q,x))}, v{VR_} offset:{lo + x*1024}')
        st = ['s_waitcnt lgkmcnt(0)', f's_add_u32 s16, s{S_ROW}, {q*4096}']
        if not opt['nost']:
            st += [f'buffer_store_dwordx4 {vr(O(q,x))}, v{VS_+x}, {sr(SRD_O)}, s16 offen offset:{x*1024}{OSC}' for x in range(4)]
        return o, st

    def chain(qs, pk, pending):
        out = []
        for q in qs:
            o, st = norm(q, pk)
            k = 16 if pk else 20
            assert o[k].startswith('ds_write')
            out += o[:k] + pending + o[k:]
            pending = st
        return out, pending

    arrive = Prog()
    arrive(f's_or_b32 s16, s{S_W}, s{S_PASS}')
    arrive(f's_or_b32 s16, s16, s{S_SELF}')
    arrive('s_cbranch_scc1 Lm_noarrive')
    srd(arrive, SRD_F, K_DBG, K_DBG + 1, 256)
    arrive(f's_and_b32 s16, s{S_RB}, 0xc0')
    arrive(f'v_mov_b32 v{V_ARR}, 1')
    arrive('s_mov_b64 exec, 1')
    arrive(f'buffer_atomic_add v{V_ARR}, off, {sr(SRD_F)}, s16 sc0 sc1')
    arrive('s_mov_b64 exec, -1')
    arrive('Lm_noarrive:')
    tailm = pv_mfmas(3)
    tailm = tailm[16:] + tailm[:16]

    def weave(mf, fills, extra, per_gap, start=0):
        for G, m in enumerate(mf):
            p(m)
            fill = fills[G]
            n = 0 if G < start else per_gap(G, fill)
            take = []
            while extra and (n > 0 or extra[0].startswith('s_')):
                x = extra.pop(0)
                take.append(x)
                if not x.startswith('s_'):
                    n -= 1
            for x in fill + take:
                p(x)

    if peel:
        p('Lm_last:')
        stamp(p, 7)
        p.extend(arrive)
        ppg = opt['ppg']
        pg = lambda G, fill: (ppg - 2 if (fill and 'exp' in fill[0]) else ppg - 1 if fill else ppg)
        e0, pend = chain([0], False, [])
        extra = setup() + e0
        weave(qk_mfmas(2) + pv_mfmas(1), [sm_fill(2, G) for G in range(34)], extra, pg, start=3)
        e1, pend = chain([1], False, pend)
        extra += ['s_nop 0'] + e1
        weave(qk_mfmas(3) + pv_mfmas(2), [sm_fill(3, G) for G in range(34)], extra, pg, start=3)
        for e in range(12, 16):
            p(f_exp(1, e))
        p('s_nop 0')
        p(f_cvt(1, 6))
        p(f_cvt(1, 7))
        p('s_nop 1')
        e2, pend = chain([2], False, pend)
        extra += e2
        weave(tailm, [[] for _ in tailm], extra, lambda G, fill: max(2, ppg))
        for x in extra:
            p(x)
        e3, pend = chain([3], True, pend)
        p('s_nop 4')
        for x in e3 + pend:
            p(x)
        p('s_branch Lm_vote')
    p('Lm_tail:')
    if not peel:
        stamp(p, 7)
        p.extend(arrive)
        for e in range(12, 16):
            p(f_exp(1, e))
        for x in setup():
            p(x)
        p(f_cvt(1, 6))
        p(f_cvt(1, 7))
        p('s_waitcnt lgkmcnt(0)')
        p('s_nop 0')
        e0, pend = chain([0], False, [])
        weave(tailm, [[] for _ in tailm], e0, lambda G, fill: 2)
        e1, pend = chain([1, 2, 3], True, pend)
        for x in e0 + e1 + pend:
            p(x)
    else:
        tail2 = Prog()
        for x in setup():
            tail2(x)
        e1, pend = chain([0, 1, 2, 3], True, [])
        for x in e1 + pend:
            tail2(x)
        tail2('s_branch Lm_vote')
        p.l.pop()
        if p.l[-1].text == 's_branch Lm_vote':
            p.l.pop()
    p('Lm_vote:')
    stamp(p, 8)
    p(f's_cmp_lg_u64 s[{S_BAD}:{S_BAD+1}], 0')
    p('s_cselect_b32 s17, 1, 0')
    if opt['forcefb']:
        p('s_mov_b32 s17, 1')
    p(f's_or_b32 s17, s17, s{S_GAVE}')
    p('v_mov_b32 v14, s17')
    p(f's_lshl_b32 s18, s{S_W}, 2')
    p(f's_add_u32 s18, s18, {LDS_VOTE}')
    p('v_mov_b32 v15, s18')
    p('ds_write_b32 v15, v14')
    p(f'v_mov_b32 v14, {LDS_VOTE}')
    p('s_waitcnt lgkmcnt(0)')
    p('s_barrier')
    p('ds_read_b128 v[16:19], v14')
    p('s_waitcnt lgkmcnt(0)')
    p('v_or_b32 v16, v16, v17')
    p('v_or3_b32 v16, v16, v18, v19')
    p('s_nop 0')
    p('v_readfirstlane_b32 s17, v16')
    p(f's_cmp_gt_u32 s17, s{S_PASS}')
    p('s_cbranch_scc1 Lm_redo')
    p(f's_cmp_lg_u32 s{S_W}, 0')
    p('s_cbranch_scc1 Lm_noepoch')
    p('s_waitcnt vmcnt(%d)' % (0 if opt['nost'] else 16))
    p(f'v_readfirstlane_b32 s17, v{V_ARR}')
    p('s_cmp_lg_u32 s17, 63')
    p('s_cbranch_scc1 Lm_noepoch')
    p(f's_add_u32 s{SRD_F}, s{K_WS}, {WS_EPOCH}')
    p(f's_addc_u32 s{SRD_F+1}, s{K_WS+1}, 0')
    srd(p, SRD_F, SRD_F, SRD_F + 1, 512)
    p(f's_and_b32 s16, s{S_RB}, 0xc0')
    p('s_lshl_b32 s16, s16, 1')
    p(f'v_mov_b32 v12, s{S_TAG}')
    p('s_mov_b64 exec, 1')
    p(f'buffer_store_dword v12, off, {sr(SRD_F)}, s16')
    p('s_mov_b64 exec, -1')
    p('Lm_noepoch:')
    if opt['stamp']:
        p('s_waitcnt vmcnt(0)')
        stamp(p, 9)
        p('s_waitcnt lgkmcnt(0)')
        if opt['spin_b']:
            p(f's_cmp_lg_u32 s2, {opt["spin_wg"]}')
            p('s_cbranch_scc1 Lm_nospin')
            p('s_cmp_lg_u32 s3, 0')
            p('s_cbranch_scc1 Lm_nospin')
            p(f's_sub_u32 s16, s{40+2*opt["spin_b"]}, s{40+2*opt["spin_a"]}')
            p('s_lshl_b32 s16, s16, 2')
            p('s_min_u32 s16, s16, 50000')
            p('s_add_u32 s16, s16, 500')
            p('Lm_spin:')
            p('s_memrealtime s[94:95]')
            p('s_waitcnt lgkmcnt(0)')
            p('s_sub_u32 s17, s94, s58')
            p('s_cmp_lt_u32 s17, s16')
            p('s_cbranch_scc1 Lm_spin')
            p('Lm_nospin:')
        p('v_mov_b32 v12, s93')
        for k in range(11):
            p(f'v_mov_b32 v13, s{40+2*k}')
            p(f'buffer_store_dword v13, v12, s[88:91], 0 offen offset:{4*k}')
    p('Lm_done:')
    p('s_endpgm')
    p('Lm_codeend:')
    epi_end = len(p.l)

    p('Lm_redo:')
    p('s_waitcnt vmcnt(0) lgkmcnt(0)')
    p('s_barrier')
    p('s_cmp_lt_u32 s17, 2')
    p('s_cbranch_scc1 Lm_truemax')
    p(f's_mov_b32 s{S_SELF}, 1')
    p(f's_mov_b32 s{S_GAVE}, 0')
    p(f's_mov_b32 s{SRD_KV+2}, {1 << 20:#x}')
    p(f's_and_b32 s{S_B0}, s{S_RB}, 0xc0')
    p(f's_add_u32 s{S_B1}, s{S_B0}, 64')
    p('s_branch Lm_prep')

    p('Lm_truemax:')
    p(f's_mov_b32 s{S_PASS}, 1')
    for x in INIT_A + INIT_L:
        p(x)
    for q in range(4):
        p(f'v_mov_b32 v{V_M+q}, 0xff800000')
    p(f'v_mov_b32 v{V_DS}, v{V_L16}')
    p(f'v_mov_b32 v{V_DK}, v{V_KP}')

    def sync_stage(label):
        p(f's_mov_b32 s{S_GOFF}, s{S_W8K}')
        p(f's_mov_b32 s{S_IT}, 0')
        p(f'{label}:')
        p('s_barrier')
        dma_stage(p, 0)
        p('s_waitcnt vmcnt(0)')
        p('s_barrier')
        for tb, ks in order:
            p(rd_k(tb, ks))
    sync_stage('Lm_fa')
    p('s_waitcnt lgkmcnt(0)')
    for q in range(4):
        for r in range(16):
            p(f'v_mov_b32 v{S(q & 1)+r}, 0')
        p('s_nop 1')
        for m in qk_mfmas(q, seeded=True):
            p(m)
        p('s_nop 7')
        for r in range(0, 16, 2):
            p(f'v_max3_f32 v{V_M+q}, v{S(q & 1)+r}, v{S(q & 1)+r+1}, v{V_M+q}')
    p(f's_add_u32 s{S_IT}, s{S_IT}, 1')
    p(f's_cmp_lt_u32 s{S_IT}, 32')
    p('s_cbranch_scc1 Lm_fa')
    for sw in ('v_permlane32_swap_b32', 'v_permlane16_swap_b32'):
        for q in range(4):
            p(f'v_mov_b32 v{V_T+q}, v{V_M+q}')
        for q in range(4):
            p(f'{sw} v{V_T+q}, v{V_M+q}')
        for q in range(4):
            p(f'v_max_f32 v{V_M+q}, v{V_T+q}, v{V_M+q}')
    p(f'v_subrev_u32 v{V_AC}, {(31 if peel else 32)*256}, v{V_AC}')
    p(f'v_subrev_u32 v{V_AW}, {(31 if peel else 32)*512}, v{V_AW}')
    sync_stage('Lm_fb')
    p('s_waitcnt lgkmcnt(0)')
    for tb in range(4):
        p(rd_c(tb))
    for x in range(18):
        if x == 8:
            p('s_waitcnt lgkmcnt(0)')
        p(rd_v(x))
    p('s_waitcnt lgkmcnt(0)')
    for q in range(4):
        for r in range(16):
            p(f'v_sub_f32 v{S(q & 1)+r}, v{V_C+r}, v{V_M+q}')
        p('s_nop 1')
        for m in qk_mfmas(q, seeded=True):
            p(m)
        p('s_nop 7')
        for e in range(16):
            p(f_exp(q & 1, e))
        for jj in range(8):
            p(f_cvt(q & 1, jj))
        p('s_nop 1')
        for m in pv_mfmas(q):
            p(m)
    p(f'v_add_u32 v{V_AC}, 256, v{V_AC}')
    p(f'v_add_u32 v{V_AW}, 512, v{V_AW}')
    p(f's_add_u32 s{S_IT}, s{S_IT}, 1')
    p(f's_cmp_lt_u32 s{S_IT}, 32')
    p('s_cbranch_scc1 Lm_fb')
    if peel:
        p.extend(tail2)
        seq = p.l[:loop_end] + p.l[pre_end:mid] + p.l[loop_end:epi_end]
        probs = check_hazards(seq, 'main') + check_hazards(p.l[epi_end:], 'rare')
    else:
        for x in INIT_P:
            p(x)
        p('s_branch Lm_tail')
        seq = p.l[:loop_end] + p.l[pre_end:epi_end]
        probs = check_hazards(seq, 'main') + check_hazards(p.l[epi_end:] + p.l[loop_end:epi_end], 'rare')
    for x in probs:
        print('HAZARD', x, file=sys.stderr)
    return p


def kd(name, nv, acc, ns):
    return f"""
.amdhsa_kernel {name}
  .amdhsa_next_free_vgpr {nv}
  .amdhsa_next_free_sgpr {ns}
  .amdhsa_accum_offset {acc}
  .amdhsa_group_segment_fixed_size 0
  .amdhsa_kernarg_size 80
  .amdhsa_user_sgpr_count 2
  .amdhsa_user_sgpr_kernarg_segment_ptr 1
  .amdhsa_system_sgpr_workgroup_id_x 1
  .amdhsa_float_denorm_mode_32 3
.end_amdhsa_kernel
"""


if __name__ == '__main__':
    pm = main()
    txt = HEADER + pm.text() + '.section .rodata,"a"\n.p2align 6' + kd(NAME + '_kernel', 464, 256, 102)
    open(sys.argv[1], 'w').write(txt)
```

```python
import sys, math, struct
from asmlib import Prog, I, check_hazards

NAME = 'standalone__kv_cache_quant_int4_int2_kv_with_per_channel_or_per_token_scales__prompt'
opt = dict(stamp=0, thr=48, nodma=0, nods=0, novalu=0, nobar=0, snake=1, traj=0, tmo=4096, forcetmo=0, forcefb=0,
           qnt=0, kvnt=0, ont=1, qa=0, qb=0, qc=2, nost=0, peel=1, ppg=3, eps=0, sb=0, hook=0, auxe=0, st1=0, unr=1, cyc=0, barg=33, brg=33, align=6, pad=0, warm=0, arrp=0, nfirst=6, voff=16, shift=11, lnt=0, perm=0, kvsc=1, spin_a=0, spin_b=0, spin_wg=100,
           bord=1, cpf=1, mz=1, pd=2, pdelay=1)
for a in sys.argv[2:]:
    k, v = a.split('=')
    assert k in opt, k
    opt[k] = int(v, 0)


def f32hex(x):
    return '0x%08x' % struct.unpack('<I', struct.pack('<f', x))[0]


CSCALE = math.log2(math.e) / math.sqrt(128.0)
MF = 'v_mfma_f32_16x16x32_bf16'
LDS_LV, LDS_W, LDS_VOTE, LDS_SIZE = 0x20000, 0x22000, 0x26000, 0x26100
WS_FLAG, WS_EPOCH, WS_DIAG = 0x400000, 0x420000, 0x800000

HEADER = f"""; KIVI-style int4 KV-cache attention (prefill, GQA 32q/4kv, S=2048, D=128), gfx950.
; @launch grid=(256,1,1) block=(256,1,1) lds={LDS_SIZE}
.amdgcn_target "amdgcn-amd-amdhsa--gfx950"
.text
"""

S_WG, S_W = 2, 3
SRD_Q, SRD_KV, SRD_O, SRD_X, SRD_S, SRD_Z, SRD_F, SRD_D = 4, 8, 12, 20, 24, 28, 84, 88
S_GOFF, S_RING, S_IT, S_W8K = 16, 17, 18, 19
S_ROW, S_T0, S_T1, S_PASS, S_DMA, S_RB = 32, 33, 34, 35, 36, 37
S_BAD = 38
S_SELF, S_B0, S_B1 = 61, 62, 63
K_Q, K_QK, K_QV, K_KS, K_KZ, K_VS, K_VZ, K_OUT, K_DBG, K_WS = 64, 66, 68, 70, 72, 74, 76, 78, 80, 82
S_EPOCH, S_TAG, S_GAVE, S_BLK = 98, 99, 100, 101

V_L16, V_L16B, V_DS, V_DK, V_AC, V_ARR, V_AW = 1, 2, 3, 4, 5, 6, 7
V_KP = 31
V_M = 8
V_T = 12
V_C = 32
V_L = 48


def srd(p, s, lo, hi, nbytes):
    if lo != s:
        p(f's_mov_b32 s{s}, s{lo}')
    p(f's_and_b32 s{s+1}, s{hi}, 0xffff')
    p(f's_mov_b32 s{s+2}, {nbytes:#x}')
    p(f's_mov_b32 s{s+3}, 0x20000')


def sr(s):
    return f's[{s}:{s+3}]'


def unpack8(p, dst, src):
    for j in range(8):
        if j & 1:
            p(f'v_and_b32 v{dst+j}, 0xffff0000, v{src + (j >> 1)}')
        else:
            p(f'v_lshlrev_b32 v{dst+j}, 16, v{src + (j >> 1)}')


def S(b):
    return 64 + 16 * b


def O(q, db):
    return 128 + 32 * q + 4 * db


def AQ(q, ks):
    return 16 * q + 4 * ks


def AK(tb, ks):
    return 64 + 16 * tb + 4 * ks


def AV(x):
    return 128 + 4 * x


def koff(tb, ks):
    return (ks >> 1) * 8192 + (tb >> 1) * 4096 + (tb & 1) * 2048 + (ks & 1) * 1024


def vr(r, n=4):
    return f'v[{r}:{r+n-1}]'


def ar(r, n=4):
    return f'a[{r}:{r+n-1}]'


def qk_order():
    o = []
    for tb in range(4):
        kss = range(4) if (tb % 2 == 0 or not opt['snake']) else range(3, -1, -1)
        o += [(tb, ks) for ks in kss]
    return o


def qk_mfmas(q, seeded=False):
    out = []
    for x, (tb, ks) in enumerate(qk_order()):
        d = vr(S(q & 1) + 4 * tb)
        c = d if (x % 4 or seeded) else vr(V_C + 4 * tb)
        out.append(f'{MF} {d}, {ar(AK(tb,ks))}, {ar(AQ(q,ks))}, {c}')
    return out


def pv_mfmas(q):
    out = []
    for x in range(18):
        s = x & 1
        d = vr(O(q, x >> 1)) if x < 16 else vr(V_L + 4 * q)
        out.append(f'{MF} {d}, {ar(AV(x))}, {vr(S(q & 1)+8*s)}, {d}')
    return out


def f_exp(b, e):
    return f'v_exp_f32 v{S(b)+e}, v{S(b)+e}'


def f_cvt(b, jj):
    base = S(b) + 8 * (jj >> 2)
    j = jj & 3
    if opt['perm']:
        return f'v_perm_b32 v{base+j}, v{base+2*j+1}, v{base+2*j}, s97'
    return f'v_cvt_pk_bf16_f32 v{base+j}, v{base+2*j}, v{base+2*j+1}'


def sm_fill(q, G):
    b = q & 1
    if G % 2 == 0 and G <= 30:
        return [f_exp(b, (G - 8) // 2)] if G >= 8 else [f_exp(1 - b, 12 + G // 2)]
    if G % 4 == 3:
        return [f_cvt(b, (G - 11) // 4)] if G >= 11 else [f_cvt(1 - b, 6 + G // 4)]
    return []


def rd_k(tb, ks):
    return f'ds_read_b128 {ar(AK(tb,ks))}, v{V_DK} offset:{koff(tb,ks)}'


def rd_c(tb):
    return f'ds_read_b128 {vr(V_C+4*tb)}, v{V_AC} offset:{tb*64}'


def rd_v(x):
    if x < 16:
        return f'ds_read_b128 {ar(AV(x))}, v{V_DS} offset:{16384 + x*1024}'
    return f'ds_read_b128 {ar(AV(x))}, v{V_AW} offset:{(x-16)*256}'


def stamp(p, idx):
    if opt['stamp']:
        p(f's_mem{"" if opt["cyc"] else "real"}time s[{40 + 2*idx}:{41 + 2*idx}]')


QN = ' nt' if opt['qnt'] else ''
KN = ' nt' if opt['kvnt'] else ''
DSC = ['', ' sc1', ' nt', ' sc1 nt', ' sc0 sc1'][opt['kvsc']]
OSC = ['', ' nt', ' sc1', ' sc0 sc1', ' sc1 nt'][opt['ont']]

INIT_A = [f'v_mov_b32 v{r}, 0' for r in range(128, 256)] + [f'v_accvgpr_write_b32 a{r}, 0' for r in range(128, 200)]
if opt['mz']:
    INIT_A = [f'v_mov_b32 v{8+r}, 0' for r in range(4)] + ['s_nop 1']
    INIT_A += [f'v_mfma_f32_32x32x16_bf16 v[{r}:{r+15}], v[8:11], v[8:11], 0' for r in range(128, 256, 16)]
    INIT_A += [f'v_mfma_f32_32x32x16_bf16 a[{r}:{r+15}], v[8:11], v[8:11], 0' for r in range(128, 208, 16)]
INIT_P = [f'v_mov_b32 v{S(1)+r}, 0' for r in range(12)] + [f'v_mov_b32 v{S(1)+r}, 0xff800000' for r in range(12, 16)]
INIT_L = [f'v_mov_b32 v{V_L+r}, 0' for r in range(16)]


V_QS = 112


def qload(p, q0, q1):
    for q in range(q0, q1):
        p(f's_add_u32 m0, s{S_W8K}, {0x10000 + (q >> 1) * 0x8000 + (q & 1) * 4096}')
        p(f's_add_u32 s{S_T1}, s{S_ROW}, {q*4096}')
        for x in range(4):
            p(f'buffer_load_dwordx4 v{V_QS+x}, {sr(SRD_Q)}, s{S_T1} offen offset:{x*1024}{QN} lds')


def qfrags(p):
    p('v_and_b32 v12, 15, v0')
    p('v_lshrrev_b32 v13, 4, v0')
    p('v_xor_b32 v13, v13, v12')
    p('v_lshlrev_b32 v12, 8, v12')
    p('v_lshl_add_u32 v12, v13, 4, v12')
    p(f's_add_u32 s{S_T1}, s{S_W8K}, 0x10000')
    p(f'v_add_u32 v12, s{S_T1}, v12')
    for ks in range(1, 4):
        p(f'v_xor_b32 v{12+ks}, {ks*64}, v12')
    return [f'ds_read_b128 {ar(AQ(q,ks))}, v{12+ks} offset:{(q >> 1) * 0x8000 + (q & 1) * 4096}' for q in range(4) for ks in range(4)]


def dma_stage(p, n):
    p(f's_add_u32 m0, s{S_W8K}, {n*32768}')
    p('s_nop 0')
    for k in range(4):
        p(f'buffer_load_dwordx4 v{V_L16}, {sr(SRD_KV)}, s{S_GOFF} offen offset:{k*1024}{DSC} lds')
    p(f's_add_u32 m0, s{S_W8K}, {n*32768 + 4096}')
    p('s_nop 0')
    for k in range(4):
        p(f'buffer_load_dwordx4 v{V_L16B}, {sr(SRD_KV)}, s{S_GOFF} offen offset:{k*1024}{DSC} lds')
    p(f's_add_u32 s{S_GOFF}, s{S_GOFF}, 0x8000')


def aux_loads(p):
    srd(p, SRD_S, K_VS, K_VS + 1, 16384)
    srd(p, SRD_Z, K_VZ, K_VZ + 1, 16384)
    p('v_lshrrev_b32 v17, 2, v0')
    p('v_and_b32 v18, 3, v0')
    p('v_lshlrev_b32 v19, 3, v18')
    p('v_lshl_add_u32 v19, v17, 6, v19')
    p(f's_and_b32 s{S_T0}, s{S_RB}, 0xc0')
    p(f's_lshl_b32 s{S_T0}, s{S_T0}, 6')
    p(f's_lshl_b32 s{S_T1}, s{S_W}, 10')
    p(f's_add_u32 s{S_T0}, s{S_T0}, s{S_T1}')
    p(f'buffer_load_dwordx2 v[120:121], v19, {sr(SRD_S)}, s{S_T0} offen')
    p(f'buffer_load_dwordx2 v[122:123], v19, {sr(SRD_S)}, s{S_T0} offen offset:32')
    p(f'buffer_load_dwordx2 v[124:125], v19, {sr(SRD_Z)}, s{S_T0} offen')
    p(f'buffer_load_dwordx2 v[126:127], v19, {sr(SRD_Z)}, s{S_T0} offen offset:32')


def aux_compute(p):
    A, B, C_, D = 32, 40, 48, 56
    unpack8(p, A, 120)
    unpack8(p, B, 124)
    p(f's_mov_b32 s{S_T0}, 0x007fffff')
    for j in range(8):
        p(f'v_and_b32 v{C_+j}, 0xff800000, v{A+j}')
        p(f'v_add_f32 v{B+j}, {f32hex(float(opt["voff"]))}, v{B+j}')
        p(f'v_and_or_b32 v{A+j}, v{A+j}, s{S_T0}, 1.0')
    for j in range(8):
        p(f'v_mul_f32 v{B+j}, v{B+j}, v{C_+j}')
        p(f'v_log_f32 v{D+j}, v{A+j}')
        p(f'v_rcp_f32 v{A+j}, v{A+j}')
    for j in range(8):
        p(f'v_add_f32 v{D+j}, {f32hex(-float(opt["shift"]) / 2)}, v{D+j}')
    p('v_lshrrev_b32 v17, 2, v0')
    p('v_and_b32 v18, 3, v0')
    p(f's_lshl_b32 s{S_T0}, s{S_W}, 11')
    p(f's_add_u32 s{S_T0}, s{S_T0}, {LDS_LV}')
    p('v_lshlrev_b32 v19, 4, v18')
    p('v_lshl_add_u32 v19, v17, 7, v19')
    p(f'v_add_u32 v19, s{S_T0}, v19')
    p(f'ds_write_b128 v19, {vr(D)}')
    p(f'ds_write_b128 v19, {vr(D+4)} offset:64')
    p(f's_lshl_b32 s{S_T0}, s{S_W}, 12')
    p(f's_add_u32 s{S_T0}, s{S_T0}, {LDS_W}')
    p(f'v_lshl_add_u32 v19, v0, 6, s{S_T0}')
    for row, src in ((0, A), (2, B)):
        hi, lo = 20, 24
        for jj in range(4):
            p(f'v_cvt_pk_bf16_f32 v{hi+jj}, v{src+2*jj}, v{src+2*jj+1}')
        unpack8(p, C_, hi)
        p(f'ds_write_b128 v19, {vr(hi)} offset:{row*16}')
        for j in range(8):
            p(f'v_sub_f32 v{C_+j}, v{src+j}, v{C_+j}')
        for jj in range(4):
            p(f'v_cvt_pk_bf16_f32 v{lo+jj}, v{C_+2*jj}, v{C_+2*jj+1}')
        p(f'ds_write_b128 v19, {vr(lo)} offset:{row*16+16}')
        if row == 0:
            p('s_waitcnt lgkmcnt(0)')


def isize(i):
    if i.kind == 'none':
        return 0
    if i.kind in ('mfma', 'ds', 'vmem'):
        return 8
    lit = any(o.startswith('0x') or (o.lstrip('-').isdigit() and not -16 <= int(o) <= 64) for o in i.ops)
    if i.kind == 'valu':
        v3 = i.op.startswith(('v_pk', 'v_cvt_pk', 'v_fma', 'v_lshl_add', 'v_or3', 'v_bfe', 'v_and_or', 'v_max3', 'v_acc')) or any(o.startswith('-v') for o in i.ops)
        return 8 if (v3 or lit) else 4
    if i.op.startswith(('s_load', 's_mem')):
        return 8
    return 8 if (lit and not i.op.startswith(('s_waitcnt', 's_nop', 's_movk'))) else 4


def add_pads(l, step, name, nparts, ret):
    pos, acc, inexec = [], step, False
    for k, i in enumerate(l):
        if acc >= step and not inexec and (k == 0 or l[k - 1].kind == 'mfma' or acc >= step + 24):
            pos.append(k)
            acc = 0
        acc += isize(i)
        if i.text.startswith('s_mov_b64 exec'):
            inexec = not i.text.endswith('-1')
    n = len(pos)
    first = [n * j // nparts for j in range(nparts)]
    out, j = [], 0
    for k, i in enumerate(l):
        if j < n and pos[j] == k:
            out.append(I(f'{name}{j}:'))
            out.append(I(f's_cbranch_execz {ret if (j + 1 == n or j + 1 in first) else name + str(j + 1)}'))
            j += 1
        out.append(i)
    return out, first


def main():
    p = Prog()
    kn = NAME + '_kernel'
    qa, qb, qc, pd = opt['qa'], opt['qb'], opt['qc'], opt['pd']
    p(f'.globl {kn}\n.p2align 8\n.type {kn},@function\n{kn}:')
    p('s_cmp_ge_u32 s2, 256')
    p('s_cbranch_scc1 Lm_done')
    stamp(p, 0)
    p('s_load_dwordx16 s[64:79], s[0:1], 0')
    p('s_load_dwordx4 s[80:83], s[0:1], 64')
    if opt['cpf'] == 2:
        p('s_getpc_b64 s[4:5]')
        p('v_lshlrev_b32 v28, 6, v0')
        p(f'v_min_u32 v28, Lm_codeend-{kn}-64, v28')
    if opt['cpf'] == 1:
        p('s_getpc_b64 s[4:5]')
        p('v_lshlrev_b32 v12, 6, v0')
        p(f'v_min_u32 v12, Lm_codeend-{kn}-64, v12')
        p('global_load_dword v27, v12, s[4:5]')
    p('v_lshrrev_b32 v12, 6, v0')
    p('v_and_b32 v0, 63, v0')
    p(f'v_readfirstlane_b32 s{S_W}, v12')
    p(f'v_lshlrev_b32 v{V_L16}, 4, v0')
    p(f'v_add_u32 v{V_L16B}, 4096, v{V_L16}')
    if opt['bord']:
        p(f's_and_b32 s{S_RB}, s2, 6')
        p(f's_lshl_b32 s{S_RB}, s{S_RB}, 5')
        p(f's_lshr_b32 s{S_T0}, s2, 3')
        p(f's_lshl_b32 s{S_T0}, s{S_T0}, 1')
        p(f's_add_u32 s{S_RB}, s{S_RB}, s{S_T0}')
        p(f's_and_b32 s{S_T0}, s2, 1')
        p(f's_add_u32 s{S_RB}, s{S_RB}, s{S_T0}')
    else:
        p(f's_and_b32 s{S_RB}, s2, 7')
        p(f's_lshl_b32 s{S_RB}, s{S_RB}, 5')
        p(f's_lshr_b32 s{S_T0}, s2, 3')
        p(f's_add_u32 s{S_RB}, s{S_RB}, s{S_T0}')
    p(f's_mov_b32 s{S_B0}, s{S_RB}')
    p(f's_add_u32 s{S_B1}, s{S_RB}, 1')
    p(f's_lshl_b32 s{S_ROW}, s{S_RB}, 16')
    p(f's_lshl_b32 s{S_T1}, s{S_W}, 14')
    p(f's_add_u32 s{S_ROW}, s{S_ROW}, s{S_T1}')
    p(f's_lshl_b32 s{S_W8K}, s{S_W}, 13')
    p(f's_mov_b32 s{S_PASS}, 0')
    p(f's_mov_b32 s{S_SELF}, 0')
    p(f's_mov_b32 s{S_GAVE}, 0')
    p('v_bfe_u32 v12, v0, 2, 2')
    p('v_lshlrev_b32 v12, 1, v12')
    p('v_mov_b32 v13, 0x78')
    p('v_bfe_u32 v12, v13, v12, 2')
    p('v_lshrrev_b32 v14, 4, v0')
    p('v_xor_b32 v12, v12, v14')
    p('v_and_b32 v15, 15, v0')
    p('v_lshl_add_u32 v12, v15, 2, v12')
    p(f'v_lshlrev_b32 v{V_KP}, 4, v12')
    p(f's_and_b32 s{S_T1}, s{S_RB}, 0xc0')
    p(f's_lshl_b32 s{S_T0}, s{S_T1}, 14')
    p(f's_lshl_b32 s{S_T1}, s{S_T1}, 1')
    p(f's_add_u32 s{S_T1}, s{S_T1}, {WS_EPOCH}')
    p('Lm_prep:')
    p('v_lshrrev_b32 v14, 4, v0')
    p('v_and_b32 v15, 15, v0')
    p('v_xor_b32 v12, v15, v14')
    p('v_lshlrev_b32 v12, 4, v12')
    p(f'v_lshl_add_u32 v{V_QS}, v14, 8, v12')
    for x in range(1, 4):
        p(f'v_xor_b32 v{V_QS+x}, {x*64}, v{V_QS}')
    p(f's_lshl_b32 s16, s{S_B0}, 14')
    p(f's_cmp_ge_u32 s{S_W}, 2')
    p('s_cbranch_scc1 Lm_offv')
    p('v_lshlrev_b32 v12, 1, v14')
    p('v_mov_b32 v13, 0x78')
    p('v_bfe_u32 v12, v13, v12, 2')
    p('v_and_b32 v13, 3, v0')
    p('v_xor_b32 v12, v12, v13')
    p('v_lshlrev_b32 v17, 4, v12')
    p('v_lshrrev_b32 v13, 2, v0')
    p('v_lshlrev_b32 v13, 9, v13')
    p('v_lshl_add_u32 v16, v12, 5, v13')
    p(f's_lshl_b32 s17, s{S_W}, 8')
    p('s_add_u32 s16, s16, s17')
    p('s_movk_i32 s94, 128')
    p('s_movk_i32 s95, 16')
    p(f's_lshr_b32 s96, s{S_B0}, 2')
    p('s_lshl_b32 s96, s96, 1')
    p(f's_add_u32 s96, s96, s{S_W}')
    p('s_lshl_b32 s96, s96, 7')
    p('s_add_u32 s97, s96, 64')
    p('s_branch Lm_offdone')
    p('Lm_offv:')
    p('v_lshlrev_b32 v17, 3, v14')
    p('v_bfe_u32 v12, v0, 2, 2')
    p('v_and_b32 v13, 3, v0')
    p('v_lshlrev_b32 v13, 4, v13')
    p('v_lshl_add_u32 v13, v12, 7, v13')
    p('v_lshl_add_u32 v16, v14, 11, v13')
    p(f's_and_b32 s17, s{S_W}, 1')
    p('s_lshl_b32 s17, s17, 6')
    p('s_add_u32 s16, s16, s17')
    p('s_movk_i32 s94, 1024')
    p('s_movk_i32 s95, 512')
    p(f's_lshl_b32 s96, s{S_B0}, 6')
    p('s_add_u32 s97, s96, 32')
    p('Lm_offdone:')
    for r in (SRD_X, SRD_S, SRD_Z):
        p(f's_mov_b32 s{r+2}, {(4 << 20) if r == SRD_X else 16384:#x}')
        p(f's_mov_b32 s{r+3}, 0x20000')
    p(f's_cmp_ge_u32 s{S_W}, 2')
    p('s_waitcnt lgkmcnt(0)')
    stamp(p, 1)
    p(f's_cselect_b64 s[{SRD_S}:{SRD_S+1}], s[{K_VS}:{K_VS+1}], s[{K_KS}:{K_KS+1}]')
    p(f's_cselect_b64 s[{SRD_Z}:{SRD_Z+1}], s[{K_VZ}:{K_VZ+1}], s[{K_KZ}:{K_KZ+1}]')
    p(f's_cselect_b64 s[{SRD_X}:{SRD_X+1}], s[{K_QV}:{K_QV+1}], s[{K_QK}:{K_QK+1}]')
    for r in (SRD_S, SRD_Z, SRD_X):
        p(f's_and_b32 s{r+1}, s{r+1}, 0xffff')
    p(f'buffer_load_dwordx4 v[96:99], v17, {sr(SRD_S)}, s96 offen')
    p(f'buffer_load_dwordx4 v[100:103], v17, {sr(SRD_S)}, s97 offen')
    p(f'buffer_load_dwordx4 v[104:107], v17, {sr(SRD_Z)}, s96 offen')
    p(f'buffer_load_dwordx4 v[108:111], v17, {sr(SRD_Z)}, s97 offen')
    for a_ in range(2):
        p(f'buffer_load_dwordx4 v[{64+16*a_}:{67+16*a_}], v16, {sr(SRD_X)}, s16 offen{KN}')
        p('s_add_u32 s17, s16, s95')
        p(f'buffer_load_dwordx4 v[{68+16*a_}:{71+16*a_}], v16, {sr(SRD_X)}, s17 offen{KN}')
        p('s_add_u32 s17, s16, s94')
        p(f'buffer_load_dwordx4 v[{72+16*a_}:{75+16*a_}], v16, {sr(SRD_X)}, s17 offen{KN}')
        p('s_add_u32 s17, s17, s95')
        p(f'buffer_load_dwordx4 v[{76+16*a_}:{79+16*a_}], v16, {sr(SRD_X)}, s17 offen{KN}')
        if a_ == 0:
            p('s_add_u32 s16, s16, 8192')
    p(f's_cmp_lg_u32 s{S_SELF}, 0')
    p('s_cbranch_scc1 Lm_havekv')
    p(f's_load_dword s{S_EPOCH}, s[{K_WS}:{K_WS+1}], s{S_T1}')
    if opt['cpf'] == 2:
        p('global_load_dword v27, v28, s[4:5]')
    p(f's_add_u32 s{SRD_KV}, s{K_WS}, s{S_T0}')
    p(f's_addc_u32 s{SRD_KV+1}, s{K_WS+1}, 0')
    srd(p, SRD_KV, SRD_KV, SRD_KV + 1, 1 << 20)
    if opt['cpf'] == 2:
        p('s_branch Lm_havekv2')
    p('Lm_havekv:')
    if opt['cpf'] == 2:
        p('s_waitcnt vmcnt(0)')
        p('Lm_havekv2:')
    aux_loads(p)
    srd(p, SRD_Q, K_Q, K_Q + 1, 16 << 20)
    qload(p, 0, qa)
    NX = 4 + 4 * qa + (opt['cpf'] == 2)
    p(f's_and_b32 s16, s{S_B0}, 63')
    p('s_lshr_b32 s17, s16, 1')
    p('s_lshl_b32 s17, s17, 15')
    p(f's_add_u32 s17, s17, s{S_W8K}')
    p('s_and_b32 s16, s16, 1')
    for x in INIT_A:
        p(x)
    p(f's_cmp_ge_u32 s{S_W}, 2')
    p('s_cbranch_scc1 Lm_prepv')
    p('s_lshl_b32 s16, s16, 12')
    p('s_add_u32 s16, s16, s17')
    p(f's_mov_b32 s17, {f32hex(CSCALE)}')
    p(f's_waitcnt vmcnt({8 + NX})')
    for ch in range(2):
        unpack8(p, 32 + 8 * ch, 96 + 4 * ch)
        unpack8(p, 48 + 8 * ch, 104 + 4 * ch)
    for j in range(16):
        p(f'v_mul_f32 v{32+j}, s17, v{32+j}')
    for j in range(16):
        p(f'v_mul_f32 v{48+j}, -v{48+j}, v{32+j}')
    for ps in range(4):
        ch = ps & 1
        p(f's_waitcnt vmcnt({6 - ps + NX})')
        if ps == 3:
            stamp(p, 2)
        r = 64 + ps * 8
        for j in range(8):
            p(f'v_cvt_f32_i32 v{r+j}, v{r+j}')
        for j in range(0, 8, 2):
            p(f'v_pk_fma_f32 {vr(r+j,2)}, {vr(r+j,2)}, {vr(32+8*ch+j,2)}, {vr(48+8*ch+j,2)}')
        for j in range(4):
            p(f'v_cvt_pk_bf16_f32 v{r+j}, v{r+2*j}, v{r+2*j+1}')
        p(f'buffer_store_dwordx4 v[{r}:{r+3}], v{V_L16}, {sr(SRD_KV)}, s16 offen offset:{ps * 1024} sc1')
    p('s_branch Lm_prepdone')
    p('Lm_prepv:')
    p('s_lshl_b32 s16, s16, 10')
    p('s_add_u32 s16, s16, s17')
    p(f's_waitcnt vmcnt({8 + NX})')
    for j in range(8):
        src = 96 + 4 * (j >> 2) + ((j & 3) >> 1)
        if j & 1:
            p(f'v_and_b32 v{32+j}, 0xff800000, v{src}')
        else:
            p(f'v_lshlrev_b32 v{32+j}, 16, v{src}')
            p(f'v_and_b32 v{32+j}, 0xff800000, v{32+j}')
    for j in range(8):
        p(f'v_mul_f32 v{40+j}, {f32hex(float(opt["voff"]))}, v{32+j}')
    for j in range(8):
        p(f's_waitcnt vmcnt({7 - j + NX})')
        if j == 7:
            stamp(p, 2)
        r = 64 + 4 * j
        for db in range(4):
            p(f'v_cvt_f32_i32 v{r+db}, v{r+db}')
        je = j & ~1
        sel = 'op_sel:[0,1,1] op_sel_hi:[1,1,1]' if j & 1 else 'op_sel:[0,0,0] op_sel_hi:[1,0,0]'
        for db in range(0, 4, 2):
            p(f'v_pk_fma_f32 {vr(r+db,2)}, {vr(r+db,2)}, {vr(32+je,2)}, {vr(40+je,2)} {sel}')
        if j & 1:
            for db in range(4):
                p(f'v_cvt_pk_bf16_f32 v{96 + 4*db + (j >> 1)}, v{r - 4 + db}, v{r + db}')
    for db in range(4):
        p(f'buffer_store_dwordx4 v[{96+4*db}:{96+4*db+3}], v{V_L16B if db & 2 else V_L16}, {sr(SRD_KV)}, s16 offen offset:{(db & 1) * 2048} sc1')
    p('Lm_prepdone:')
    p(f's_add_u32 s{S_B0}, s{S_B0}, 1')
    p(f's_cmp_lt_u32 s{S_B0}, s{S_B1}')
    p('s_cbranch_scc1 Lm_prep')
    if opt['sb']:
        p('s_barrier')
    qload(p, qa, qb)
    if opt['auxe']:
        p(f's_waitcnt vmcnt({4*qb + 4})')
        aux_compute(p)
    srd(p, SRD_O, K_OUT, K_OUT + 1, 16 << 20)
    p(f's_and_b32 s16, s{S_RB}, 0xc0')
    p('s_lshl_b32 s16, s16, 7')
    p(f's_add_u32 s16, s16, {WS_FLAG}')
    p(f's_add_u32 s{SRD_F}, s{K_WS}, s16')
    p(f's_addc_u32 s{SRD_F+1}, s{K_WS+1}, 0')
    srd(p, SRD_F, SRD_F, SRD_F + 1, 8192)
    p('v_lshlrev_b32 v13, 7, v0')
    p(f's_and_b32 s16, s{S_RB}, 63')
    p('s_lshl_b32 s16, s16, 7')
    p(f's_mov_b32 s{S_IT}, 0')
    p(f's_waitcnt vmcnt({4*(qb - qa)}) lgkmcnt(0)')
    stamp(p, 3)
    p(f's_mul_i32 s{S_TAG}, s{S_EPOCH}, 0x9e3779b1')
    p(f's_add_u32 s{S_TAG}, s{S_TAG}, 0x85ebca6b')
    p(f'v_mov_b32 v12, s{S_TAG}')
    p(f's_or_b32 s17, s{S_W}, s{S_SELF}')
    p('s_barrier')
    p('s_cbranch_scc1 Lm_nopub')
    p('s_mov_b64 exec, 1')
    p(f'buffer_store_dword v12, off, {sr(SRD_F)}, s16 sc1')
    p('s_mov_b64 exec, -1')
    p('Lm_nopub:')
    qload(p, qb, qc)
    if not opt['auxe']:
        aux_compute(p)
    p(f's_cmp_lg_u32 s{S_W}, 0')
    p('s_cbranch_scc1 Lm_nopoll')
    p(f's_cmp_lg_u32 s{S_SELF}, 0')
    p('s_cbranch_scc1 Lm_got')
    p('Lm_poll:')
    p(f'buffer_load_dword v15, v13, {sr(SRD_F)}, 0 offen sc1')
    p(f's_add_u32 s{S_IT}, s{S_IT}, 1')
    p('s_waitcnt vmcnt(0)')
    p('v_cmp_ne_u32 vcc, v15, v12')
    if opt['forcetmo']:
        p('s_mov_b64 vcc, -1')
    p('s_cbranch_vccz Lm_got')
    p(f's_cmp_lt_u32 s{S_IT}, {opt["tmo"]}')
    p('s_cbranch_scc1 Lm_poll')
    p(f's_mov_b32 s{S_GAVE}, 2')
    p('Lm_got:')
    stamp(p, 4)
    if opt['warm']:
        p('s_branch Lm_polled')
    p('Lm_nopoll:')
    if opt['warm']:
        p('s_mov_b64 exec, 0')
        p(f's_cmp_eq_u32 s{S_W}, 1')
        p('s_cbranch_scc1 Lm_padA')
        p(f's_cmp_eq_u32 s{S_W}, 2')
        p('s_cbranch_scc1 Lm_padB')
        p('s_branch Lm_padC')
        p('Lm_warmed:')
        p('s_mov_b64 exec, -1')
        p('Lm_polled:')
    p(f's_mov_b32 s{S_GOFF}, s{S_W8K}')
    p('s_barrier')
    hook, st1 = opt['hook'], opt['st1']
    dma_stage(p, 0)
    qload(p, qc, 4)
    if st1 == 0:
        dma_stage(p, 1)
    n1 = 8 if st1 == 0 else 0
    qr = qfrags(p)
    p(f's_waitcnt vmcnt({8 + n1 + 4*(4 - qc)})')
    for x in qr[:4*qc]:
        p(x)
    p('Lm_all:')
    if opt['stamp']:
        p(f's_mov_b32 s60, s{S_IT}')
    if opt['traj'] or opt['stamp']:
        p(f's_add_u32 s88, s{K_WS}, {WS_DIAG}')
        p(f's_addc_u32 s89, s{K_WS+1}, 0')
        srd(p, 88, 88, 89, 1 << 20)
        p('s_lshl_b32 s92, s2, 2')
        p('s_add_u32 s92, s92, s3')
        p('s_lshl_b32 s92, s92, 9')
        p('s_add_u32 s93, s92, 256')
    for x in INIT_L + INIT_P:
        p(x)
    assert pd == 2
    VW, VR_, VS_, X = 22, 26, V_QS, 96
    p('v_and_b32 v17, 15, v0')
    p('v_lshrrev_b32 v18, 4, v0')
    p('v_lshlrev_b32 v18, 2, v18')
    p('v_xor_b32 v18, v18, v17')
    p('v_lshlrev_b32 v17, 8, v17')
    p(f'v_lshl_add_u32 v{VW}, v18, 4, v17')
    p(f's_add_u32 s{S_T1}, s{S_W8K}, 0x10000')
    p(f'v_add_u32 v{VW}, s{S_T1}, v{VW}')
    for r in range(1, 4):
        p(f'v_xor_b32 v{VW+r}, {r*16}, v{VW}')
    p(f'v_add_u32 v{VR_}, s{S_T1}, v{V_L16}')
    p(f'v_mov_b32 v{V_DS}, v{V_L16}')
    p(f'v_mov_b32 v{V_DK}, v{V_KP}')
    p('v_lshrrev_b32 v17, 4, v0')
    p('v_and_b32 v18, 3, v0')
    p(f'v_lshlrev_b32 v{V_AC}, 4, v17')
    p(f'v_add_u32 v{V_AC}, {LDS_LV}, v{V_AC}')
    p('v_lshl_add_u32 v18, v17, 2, v18')
    p(f'v_lshlrev_b32 v{V_AW}, 4, v18')
    p(f'v_add_u32 v{V_AW}, {LDS_W}, v{V_AW}')
    if opt['perm']:
        p('s_mov_b32 s97, 0x07060302')
    p(f's_mov_b32 s{S_RING}, 0')
    p(f's_add_u32 s{S_DMA}, s{S_W8K}, {pd * 0x8000}')
    p(f's_mov_b32 s{S_IT}, 0')
    p(f's_waitcnt vmcnt({n1 + 4*(4 - qc)}) lgkmcnt(0)')
    p('s_barrier')
    stamp(p, 5)
    order = qk_order()
    for tb in range(4):
        p(rd_c(tb))
        for x in range(4):
            p(rd_k(*order[4 * tb + x]))
    if st1 == 1:
        dma_stage(p, 1)
    if qc < 4 and not hook:
        p('s_waitcnt vmcnt(8)')
        for x in qr[4*qc:]:
            p(x)
    if hook:
        assert qc >= 2
        p('s_mov_b64 vcc, -1')
    stamp(p, 6)
    p('s_waitcnt lgkmcnt(%d)' % (0 if (opt['stamp'] or (qc < 4 and not hook)) else 10))
    pre_end = len(p.l)

    peel = opt['peel']

    def dma(k):
        return f'buffer_load_dwordx4 v{V_L16 if k < 4 else V_L16B}, {sr(SRD_KV)}, s{S_GOFF} offen offset:{(k & 3)*1024}{DSC}{" nt" if opt["lnt"] else ""} lds'
    DMA_AT = {(0, 5): 0, (0, 13): 1, (1, 21): 2, (1, 29): 3, (2, 5): 4, (2, 13): 5, (2, 21): 6, (2, 29): 7}

    def gap(q, G):
        sh = []
        fill = [] if opt['novalu'] else sm_fill(q, G)
        rd = []
        if q == 0 and G >= 17 and G % 4 == 1:
            rd = [rd_v(2 * ((G - 17) // 4) + k) for k in range(2)]
        if q == 1 and G in (1, 5, 9, 13):
            rd = [rd_v(10 + 2 * ((G - 1) // 4) + k) for k in range(2)]
        if q == 3 and G < 32:
            tb, gg = G // 8, G % 8
            if gg == 1:
                rd = [rd_c(tb), rd_k(*order[4 * tb])]
            if gg == 3:
                rd = [rd_k(*order[4 * tb + 1])]
            if gg == 5:
                rd = [rd_k(*order[4 * tb + 2]), rd_k(*order[4 * tb + 3])]
        if not opt['nods']:
            sh += rd
        if q == 0 and G == 7:
            sh.append('s_waitcnt lgkmcnt(0)')
        if q == 1 and G == 15:
            sh.append('s_waitcnt lgkmcnt(8)')
        if q == 1 and G == 25:
            sh.append('s_waitcnt lgkmcnt(0)')
        if q == 3 and G == 32:
            sh.append('s_waitcnt lgkmcnt(10)')
        if q == 0 and G == 4:
            sh.append(f's_mov_b32 m0, s{S_DMA}')
        if q == 2 and G == 4:
            sh.append(f's_add_u32 m0, s{S_DMA}, 4096')
        if (q, G) in DMA_AT and not opt['nodma']:
            sh.append(dma(DMA_AT[(q, G)]))
        if hook:
            if q == 1 and G == 17 and qc <= 2:
                sh += ['s_cbranch_vccnz Lm_hook2', 'Lm_back2:']
            if q == 2 and G == 23 and qc <= 3:
                sh += ['s_cbranch_vccnz Lm_hook3', 'Lm_back3:']
        if q == 1 and peel:
            if G == 30:
                sh.append(f's_cmp_eq_u32 s{S_IT}, 31')
            if G == 33:
                sh.append('s_cbranch_scc1 Lm_last')
        if q == 2:
            if G == 1:
                fill.append(f'v_add_u32 v{V_AC}, 256, v{V_AC}')
            if G == 9:
                fill.append(f'v_add_u32 v{V_AW}, 512, v{V_AW}')
            if G == 6 and pd == 3:
                sh.append(f's_add_u32 s{S_DMA}, s{S_RING}, s{S_W8K}')
            if G == 14 and pd == 2:
                sh.append(f's_xor_b32 s{S_DMA}, s{S_RING}, 0x10000')
            if G == 16 and pd == 2:
                sh.append(f's_add_u32 s{S_DMA}, s{S_DMA}, s{S_W8K}')
            if G == 25:
                fill.append(f'v_add_u32 v{V_DK}, s{S_RING}, v{V_KP}')
            if G == 8:
                sh.append(f's_add_u32 s{S_RING}, s{S_RING}, 0x8000')
            if G == 10:
                sh.append(f's_and_b32 s{S_RING}, s{S_RING}, 0x1ffff')
            if G == 17:
                fill.append(f'v_add_u32 v{V_DS}, s{S_RING}, v{V_L16}')
            if G == 30:
                sh.append(f's_add_u32 s{S_GOFF}, s{S_GOFF}, 0x8000')
            if G == 12:
                sh.append(f's_add_u32 s{S_IT}, s{S_IT}, 1')
            if G == min(32, opt['barg']):
                sh.append(f's_waitcnt vmcnt({8 * (pd - 1)})' + (' lgkmcnt(0)' if hook else ''))
            if G == opt['barg'] and not opt['nobar']:
                sh.append('s_barrier')
            if opt['traj']:
                if G == 0:
                    sh.append('s_memtime s[94:95]')
                if G == 2:
                    sh.append('s_memrealtime s[96:97]')
                if G == 22:
                    sh.append('s_waitcnt lgkmcnt(0)')
                if G == 25:
                    fill += ['v_mov_b32 v12, s94']
                if G == 32:
                    fill += ['v_mov_b32 v14, s92', 'v_mov_b32 v13, s96']
                if G == 33:
                    fill += ['buffer_store_dwordx2 v[12:13], v14, s[88:91], 0 offen', 's_add_u32 s92, s92, 8']
        if q == 3:
            if peel:
                if G == 33:
                    sh.append('s_branch Lm_loop')
            else:
                if G == 30:
                    sh.append(f's_cmp_lt_u32 s{S_IT}, 32')
                if G == 33:
                    sh.append('s_cbranch_scc1 Lm_loop')
        return sh, fill

    p(f'.p2align {opt["align"]}')
    for _ in range(opt['pad']):
        p('s_nop 0')
    p('Lm_loop:')
    mid = None
    for u in range(opt['unr']):
        for q in range(4):
            if q == 2:
                mid = len(p.l)
            mf = qk_mfmas(q) + pv_mfmas((q - 1) & 3)
            for G in range(34):
                sh, fill = gap(q, G)
                if u < opt['unr'] - 1:
                    sh = [x for x in sh if 'Lm_loop' not in x and 'Lm_last' not in x and not x.startswith('s_cmp')]
                if u > 0:
                    sh = [x for x in sh if 'Lm_hook' not in x and 'Lm_back' not in x]
                p(mf[G])
                for x in sh + fill:
                    p(x)
    loop_end = len(p.l)
    if hook:
        assert peel
        if qc <= 2:
            p('Lm_hook2:')
            p('s_waitcnt vmcnt(14)')
            for x in qr[8:12]:
                p(x)
            p('s_branch Lm_back2')
        if qc <= 3:
            p('Lm_hook3:')
            p('s_waitcnt vmcnt(15)')
            for x in qr[12:16]:
                p(x)
            p('s_mov_b64 vcc, 0')
            p('s_branch Lm_back3')
    loop_end2 = len(p.l)

    def setup():
        return []

    def norm(q, pk):
        o = []
        L = V_L + 4 * q
        lo = (q & 1) * 4096
        o.append(f'v_add_f32 v{L}, v{L}, v{L+1}')
        o.append(f'v_add_f32 v{L+2}, v{L+2}, v{L+3}')
        if opt['eps']:
            o[-2] = f'v_mul_f32 v{L}, {f32hex(1.0/(1.0 + opt["eps"]*1e-3))}, v{L}'
        o.insert(1, f'v_rcp_f32 v{L}, v{L}')
        o.append(f'v_mul_f32 v{L+2}, -v{L+2}, v{L}')
        for wv in range(2):
            for h in range(2):
                for db in range(4 * wv, 4 * wv + 4):
                    r = O(q, db) + 2 * h
                    if pk:
                        o.append(f'v_pk_fma_f32 {vr(r,2)}, {vr(r,2)}, {vr(L,2)}, {vr(L+2,2)} op_sel:[0,0,0] op_sel_hi:[1,0,0]')
                    else:
                        o.append(f'v_fma_f32 v{r}, v{r}, v{L}, v{L+2}')
                        o.append(f'v_fma_f32 v{r+1}, v{r+1}, v{L}, v{L+2}')
                c = 2 * wv + h
                for w in range(4):
                    db, i = 4 * wv + 2 * (w & 1), 2 * h + (w >> 1)
                    o.append(f'v_cvt_pk_bf16_f32 v{X + 4*c + w}, v{O(q,db)+i}, v{O(q,db+1)+i}')
                o.append(f'ds_write_b128 v{VW+c}, {vr(X+4*c)} offset:{lo}')
        for x in range(4):
            o.append(f'ds_read_b128 {vr(O(q,x))}, v{VR_} offset:{lo + x*1024}')
        st = ['s_waitcnt lgkmcnt(0)', f's_add_u32 s16, s{S_ROW}, {q*4096}']
        if not opt['nost']:
            st += [f'buffer_store_dwordx4 {vr(O(q,x))}, v{VS_+x}, {sr(SRD_O)}, s16 offen offset:{x*1024}{OSC}' for x in range(4)]
        return o, st

    def chain(qs, pk, pending):
        out = []
        for q in qs:
            o, st = norm(q, pk)
            k = 12 if pk else 16
            assert o[k].startswith('ds_write')
            out += o[:k] + pending + o[k:]
            pending = st
        return out, pending

    arrive = Prog()
    arrive(f's_or_b32 s16, s{S_W}, s{S_PASS}')
    arrive(f's_or_b32 s16, s16, s{S_SELF}')
    arrive('s_cbranch_scc1 Lm_noarrive')
    srd(arrive, SRD_F, K_DBG, K_DBG + 1, 256)
    arrive(f's_and_b32 s16, s{S_RB}, 0xc0')
    arrive(f'v_mov_b32 v{V_ARR}, 1')
    arrive('s_mov_b64 exec, 1')
    arrive(f'buffer_atomic_add v{V_ARR}, off, {sr(SRD_F)}, s16 sc0 sc1')
    arrive('s_mov_b64 exec, -1')
    arrive('Lm_noarrive:')
    tailm = pv_mfmas(3)
    tailm = tailm[16:] + tailm[:16]

    def weave(mf, fills, extra, per_gap, start=0):
        for G, m in enumerate(mf):
            p(m)
            fill = fills[G]
            n = 0 if G < start else per_gap(G, fill)
            take = []
            while extra and (n > 0 or extra[0].startswith('s_')):
                x = extra.pop(0)
                take.append(x)
                if not x.startswith('s_'):
                    n -= 1
            for x in fill + take:
                p(x)

    def parts(q):
        o, st = norm(q, True)
        pick = lambda pre: [x for x in o[4:] if x.startswith(pre)]
        return o[:4], pick('v_pk_fma'), pick('v_cvt'), pick('ds_write'), pick('ds_read'), st

    def segment(mf, fills, plan, c, w, r, lumps):
        c, w, r = list(c), list(w), list(r)
        for G, m in enumerate(mf):
            p(m)
            pre, post = [], []
            for ch in plan.get(G, ''):
                if ch == 'c':
                    post.append(c.pop(0))
                else:
                    pre.append((w if ch == 'w' else r).pop(0))
            for x in pre + fills[G] + post + lumps.get(G, []):
                p(x)
        assert not (c or w or r)

    if peel:
        p('Lm_last:')
        stamp(p, 7)
        plan = {5: 'cc', 7: 'c', 9: 'cc', 11: 'w', 13: 'cc', 15: 'c', 17: 'cc', 19: 'w', 21: 'cc', 23: 'w', 25: 'cc', 27: 'c',
                29: 'c', 31: 'w', 32: 'rr', 33: 'rr'}
        h, f, c, w, r, st0 = parts(0)
        segment(qk_mfmas(2) + pv_mfmas(1), [sm_fill(2, G) for G in range(34)], plan, c, w, r,
                {3: [x.text for x in arrive.l] + h + f})
        h, f, c, w, r, st1_ = parts(1)
        segment(qk_mfmas(3) + pv_mfmas(2), [sm_fill(3, G) for G in range(34)], plan, c, w, r, {3: ['s_nop 0'] + h + f + st0})
        for e in range(12, 16):
            p(f_exp(1, e))
        h, f, c, w, r, st2 = parts(2)
        p(f_cvt(1, 6))
        p(f_cvt(1, 7))
        for x in h + f + st1_:
            p(x)
        h3, f3, c3, w3, r3, st3 = parts(3)
        plan = {0: 'cc', 1: 'cc', 2: 'cc', 3: 'wc', 4: 'cc', 5: 'wc', 6: 'cc', 7: 'wc', 8: 'cc', 9: 'c', 11: 'wr', 12: 'rr', 13: 'r'}
        segment(tailm, [[] for _ in tailm], plan, c, w, r, {9: h3[:1], 10: h3[1:2], 13: h3[2:3], 14: h3[3:]})
        o3, _ = norm(3, True)
        for x in st2 + o3[4:] + st3:
            p(x)
        p('s_branch Lm_vote')
    p('Lm_tail:')
    if not peel:
        stamp(p, 7)
        p.extend(arrive)
        for e in range(12, 16):
            p(f_exp(1, e))
        for x in setup():
            p(x)
        p(f_cvt(1, 6))
        p(f_cvt(1, 7))
        p('s_waitcnt lgkmcnt(0)')
        p('s_nop 0')
        e0, pend = chain([0], False, [])
        weave(tailm, [[] for _ in tailm], e0, lambda G, fill: 2)
        e1, pend = chain([1, 2, 3], True, pend)
        for x in e0 + e1 + pend:
            p(x)
    else:
        tail2 = Prog()
        for x in setup():
            tail2(x)
        e1, pend = chain([0, 1, 2, 3], True, [])
        for x in e1 + pend:
            tail2(x)
        tail2('s_branch Lm_vote')
        p.l.pop()
        if p.l[-1].text == 's_branch Lm_vote':
            p.l.pop()
    p('Lm_vote:')
    stamp(p, 8)
    p(f'v_max3_f32 v12, v{V_L}, v{V_L+4}, v{V_L+8}')
    p(f'v_min3_f32 v13, v{V_L}, v{V_L+4}, v{V_L+8}')
    p(f'v_add_f32 v14, v{V_L}, v{V_L+4}')
    p(f'v_add_f32 v15, v{V_L+8}, v{V_L+12}')
    p(f'v_max_f32 v12, v12, v{V_L+12}')
    p(f'v_min_f32 v13, v13, v{V_L+12}')
    p(f'v_cmp_u_f32 s[{S_BAD}:{S_BAD+1}], v14, v15')
    p(f'v_cmp_le_f32 vcc, {f32hex(2.0**(opt["thr"] + opt["shift"] // 2))}, v12')
    p(f's_or_b64 s[{S_BAD}:{S_BAD+1}], s[{S_BAD}:{S_BAD+1}], vcc')
    p(f'v_cmp_ge_f32 vcc, {f32hex(2.0**(-opt["thr"] + opt["shift"] // 2))}, v13')
    p(f's_or_b64 s[{S_BAD}:{S_BAD+1}], s[{S_BAD}:{S_BAD+1}], vcc')
    p('s_cselect_b32 s17, 1, 0')
    if opt['forcefb']:
        p('s_mov_b32 s17, 1')
    p(f's_or_b32 s17, s17, s{S_GAVE}')
    p('v_mov_b32 v14, s17')
    p(f's_lshl_b32 s18, s{S_W}, 2')
    p(f's_add_u32 s18, s18, {LDS_VOTE}')
    p('v_mov_b32 v15, s18')
    p('ds_write_b32 v15, v14')
    p(f'v_mov_b32 v14, {LDS_VOTE}')
    p('s_waitcnt lgkmcnt(0)')
    p('s_barrier')
    p('ds_read_b128 v[16:19], v14')
    p('s_waitcnt lgkmcnt(0)')
    p('v_or_b32 v16, v16, v17')
    p('v_or3_b32 v16, v16, v18, v19')
    p('s_nop 0')
    p('v_readfirstlane_b32 s17, v16')
    p(f's_cmp_gt_u32 s17, s{S_PASS}')
    p('s_cbranch_scc1 Lm_redo')
    p(f's_cmp_lg_u32 s{S_W}, 0')
    p('s_cbranch_scc1 Lm_noepoch')
    p('s_waitcnt vmcnt(%d)' % (0 if opt['nost'] else 16))
    p(f'v_readfirstlane_b32 s17, v{V_ARR}')
    p('s_cmp_lg_u32 s17, 63')
    p('s_cbranch_scc1 Lm_noepoch')
    p(f's_add_u32 s{SRD_F}, s{K_WS}, {WS_EPOCH}')
    p(f's_addc_u32 s{SRD_F+1}, s{K_WS+1}, 0')
    srd(p, SRD_F, SRD_F, SRD_F + 1, 512)
    p(f's_and_b32 s16, s{S_RB}, 0xc0')
    p('s_lshl_b32 s16, s16, 1')
    p(f'v_mov_b32 v12, s{S_TAG}')
    p('s_mov_b64 exec, 1')
    p(f'buffer_store_dword v12, off, {sr(SRD_F)}, s16')
    p('s_mov_b64 exec, -1')
    p('Lm_noepoch:')
    if opt['stamp']:
        p('s_waitcnt vmcnt(0)')
        stamp(p, 9)
        p('s_waitcnt lgkmcnt(0)')
        if opt['spin_b']:
            p(f's_cmp_lg_u32 s2, {opt["spin_wg"]}')
            p('s_cbranch_scc1 Lm_nospin')
            p('s_cmp_lg_u32 s3, 0')
            p('s_cbranch_scc1 Lm_nospin')
            p(f's_sub_u32 s16, s{40+2*opt["spin_b"]}, s{40+2*opt["spin_a"]}')
            p('s_lshl_b32 s16, s16, 2')
            p('s_min_u32 s16, s16, 50000')
            p('s_add_u32 s16, s16, 500')
            p('Lm_spin:')
            p('s_memrealtime s[94:95]')
            p('s_waitcnt lgkmcnt(0)')
            p('s_sub_u32 s17, s94, s58')
            p('s_cmp_lt_u32 s17, s16')
            p('s_cbranch_scc1 Lm_spin')
            p('Lm_nospin:')
        p('v_mov_b32 v12, s93')
        for k in range(11):
            p(f'v_mov_b32 v13, s{40+2*k}')
            p(f'buffer_store_dword v13, v12, s[88:91], 0 offen offset:{4*k}')
    if opt['warm']:
        body, first = add_pads(p.l[loop_end2:], opt['warm'], 'Lm_pad', 3, 'Lm_warmed')
        p.l = p.l[:loop_end2] + body
        for i in p.l:
            for c, f in zip('ABC', first):
                if i.text.endswith('Lm_pad' + c):
                    i.text = i.text[:-1] + str(f)
    p('Lm_done:')
    p('s_endpgm')
    p('Lm_codeend:')
    epi_end = len(p.l)

    p('Lm_redo:')
    p('s_waitcnt vmcnt(0) lgkmcnt(0)')
    p('s_barrier')
    p('s_cmp_lt_u32 s17, 2')
    p('s_cbranch_scc1 Lm_truemax')
    p(f's_mov_b32 s{S_SELF}, 1')
    p(f's_mov_b32 s{S_GAVE}, 0')
    p(f's_and_b32 s{S_B0}, s{S_RB}, 0xc0')
    p(f's_add_u32 s{S_B1}, s{S_B0}, 64')
    p('s_branch Lm_prep')

    p('Lm_truemax:')
    p(f's_mov_b32 s{S_PASS}, 1')
    for x in INIT_A + INIT_L:
        p(x)
    for q in range(4):
        p(f'v_mov_b32 v{V_M+q}, 0xff800000')
    p(f'v_mov_b32 v{V_DS}, v{V_L16}')
    p(f'v_mov_b32 v{V_DK}, v{V_KP}')

    def sync_stage(label):
        p(f's_mov_b32 s{S_GOFF}, s{S_W8K}')
        p(f's_mov_b32 s{S_IT}, 0')
        p(f'{label}:')
        p('s_barrier')
        dma_stage(p, 0)
        p('s_waitcnt vmcnt(0)')
        p('s_barrier')
        for tb, ks in order:
            p(rd_k(tb, ks))
    sync_stage('Lm_fa')
    p('s_waitcnt lgkmcnt(0)')
    for q in range(4):
        for r in range(16):
            p(f'v_mov_b32 v{S(q & 1)+r}, 0')
        p('s_nop 1')
        for m in qk_mfmas(q, seeded=True):
            p(m)
        p('s_nop 7')
        for r in range(0, 16, 2):
            p(f'v_max3_f32 v{V_M+q}, v{S(q & 1)+r}, v{S(q & 1)+r+1}, v{V_M+q}')
    p(f's_add_u32 s{S_IT}, s{S_IT}, 1')
    p(f's_cmp_lt_u32 s{S_IT}, 32')
    p('s_cbranch_scc1 Lm_fa')
    for sw in ('v_permlane32_swap_b32', 'v_permlane16_swap_b32'):
        for q in range(4):
            p(f'v_mov_b32 v{V_T+q}, v{V_M+q}')
        for q in range(4):
            p(f'{sw} v{V_T+q}, v{V_M+q}')
        for q in range(4):
            p(f'v_max_f32 v{V_M+q}, v{V_T+q}, v{V_M+q}')
    p(f'v_subrev_u32 v{V_AC}, {(31 if peel else 32)*256}, v{V_AC}')
    p(f'v_subrev_u32 v{V_AW}, {(31 if peel else 32)*512}, v{V_AW}')
    sync_stage('Lm_fb')
    p('s_waitcnt lgkmcnt(0)')
    for tb in range(4):
        p(rd_c(tb))
    for x in range(18):
        if x == 8:
            p('s_waitcnt lgkmcnt(0)')
        p(rd_v(x))
    p('s_waitcnt lgkmcnt(0)')
    for q in range(4):
        for r in range(16):
            p(f'v_sub_f32 v{S(q & 1)+r}, v{V_C+r}, v{V_M+q}')
        p('s_nop 1')
        for m in qk_mfmas(q, seeded=True):
            p(m)
        p('s_nop 7')
        for e in range(16):
            p(f_exp(q & 1, e))
        for jj in range(8):
            p(f_cvt(q & 1, jj))
        p('s_nop 1')
        for m in pv_mfmas(q):
            p(m)
    p(f'v_add_u32 v{V_AC}, 256, v{V_AC}')
    p(f'v_add_u32 v{V_AW}, 512, v{V_AW}')
    p(f's_add_u32 s{S_IT}, s{S_IT}, 1')
    p(f's_cmp_lt_u32 s{S_IT}, 32')
    p('s_cbranch_scc1 Lm_fb')
    if peel:
        p.extend(tail2)
        seq = p.l[:loop_end] + p.l[pre_end:mid] + p.l[loop_end2:epi_end]
        probs = check_hazards(seq, 'main') + check_hazards(p.l[epi_end:], 'rare')
    else:
        for x in INIT_P:
            p(x)
        p('s_branch Lm_tail')
        seq = p.l[:loop_end] + p.l[pre_end:epi_end]
        probs = check_hazards(seq, 'main') + check_hazards(p.l[epi_end:] + p.l[loop_end:epi_end], 'rare')
    for x in probs:
        print('HAZARD', x, file=sys.stderr)
    return p


def kd(name, nv, acc, ns):
    return f"""
.amdhsa_kernel {name}
  .amdhsa_next_free_vgpr {nv}
  .amdhsa_next_free_sgpr {ns}
  .amdhsa_accum_offset {acc}
  .amdhsa_group_segment_fixed_size 0
  .amdhsa_kernarg_size 80
  .amdhsa_user_sgpr_count 2
  .amdhsa_user_sgpr_kernarg_segment_ptr 1
  .amdhsa_system_sgpr_workgroup_id_x 1
  .amdhsa_float_denorm_mode_32 3
.end_amdhsa_kernel
"""


if __name__ == '__main__':
    pm = main()
    txt = HEADER + pm.text() + '.section .rodata,"a"\n.p2align 6' + kd(NAME + '_kernel', 464, 256, 102)
    open(sys.argv[1], 'w').write(txt)
```

```python
import sys, math, struct
from asmlib import Prog, I, check_hazards

NAME = 'standalone__kv_cache_quant_int4_int2_kv_with_per_channel_or_per_token_scales__prompt'
opt = dict(stamp=0, cyc=0, thr=48, nodma=0, nods=0, novalu=0, nobar=0, snake=1, traj=0, tmo=4096, forcetmo=0, forcefb=0,
           qnt=0, kvnt=0, ont=1, qa=0, qb=0, qc=2, qd=3, thq=4, nf=6, nost=0, eps=0, perm=0, lnt=0, voff=16, shift=11, kvsc=1,
           spin_a=0, spin_b=0, spin_wg=100, bord=1, cpf=1, align=6, rot=1)
for a in sys.argv[2:]:
    k, v = a.split('=')
    assert k in opt, k
    opt[k] = int(v, 0)


def f32hex(x):
    return '0x%08x' % struct.unpack('<I', struct.pack('<f', x))[0]


CSCALE = math.log2(math.e) / math.sqrt(128.0)
MF = 'v_mfma_f32_16x16x32_bf16'
LDS_LV, LDS_W, LDS_VOTE, LDS_SIZE = 0x20000, 0x22000, 0x26000, 0x26100
WS_FLAG, WS_EPOCH, WS_DIAG = 0x400000, 0x420000, 0x800000

HEADER = f"""; KIVI-style int4 KV-cache attention (prefill, GQA 32q/4kv, S=2048, D=128), gfx950.
; @launch grid=(256,1,1) block=(256,1,1) lds={LDS_SIZE}
.amdgcn_target "amdgcn-amd-amdhsa--gfx950"
.text
"""

S_WG, S_W = 2, 3
SRD_Q, SRD_KV, SRD_O, SRD_X, SRD_S, SRD_Z, SRD_F, SRD_D = 4, 8, 12, 20, 24, 28, 84, 88
S_GOFF, S_RING, S_IT, S_W8K = 16, 17, 18, 19
S_ROW, S_T0, S_T1, S_PASS, S_DMA, S_RB = 32, 33, 34, 35, 36, 37
S_BAD = 38
S_SELF, S_B0, S_B1 = 61, 62, 63
K_Q, K_QK, K_QV, K_KS, K_KZ, K_VS, K_VZ, K_OUT, K_DBG, K_WS = 64, 66, 68, 70, 72, 74, 76, 78, 80, 82
S_EPOCH, S_TAG, S_GAVE, S_BLK = 98, 99, 100, 101

V_L16, V_L16B, V_DS, V_DK, V_AC, V_ARR, V_AW = 1, 2, 3, 4, 5, 6, 7
V_KP = 31
V_M = 8
V_T = 12
V_C = 32
V_L = 48


def srd(p, s, lo, hi, nbytes):
    if lo != s:
        p(f's_mov_b32 s{s}, s{lo}')
    p(f's_and_b32 s{s+1}, s{hi}, 0xffff')
    p(f's_mov_b32 s{s+2}, {nbytes:#x}')
    p(f's_mov_b32 s{s+3}, 0x20000')


def sr(s):
    return f's[{s}:{s+3}]'


def unpack8(p, dst, src):
    for j in range(8):
        if j & 1:
            p(f'v_and_b32 v{dst+j}, 0xffff0000, v{src + (j >> 1)}')
        else:
            p(f'v_lshlrev_b32 v{dst+j}, 16, v{src + (j >> 1)}')


def S(b):
    return 64 + 16 * b


def O(q, db):
    return 128 + 32 * q + 4 * db


def AQ(q, ks):
    return 16 * q + 4 * ks


def AK(tb, ks):
    return 64 + 16 * tb + 4 * ks


def AV(x):
    return 128 + 4 * x


def koff(tb, ks):
    return (ks >> 1) * 8192 + (tb >> 1) * 4096 + (tb & 1) * 2048 + (ks & 1) * 1024


def vr(r, n=4):
    return f'v[{r}:{r+n-1}]'


def ar(r, n=4):
    return f'a[{r}:{r+n-1}]'


def qk_order():
    o = []
    for tb in range(4):
        kss = range(4) if (tb % 2 == 0 or not opt['snake']) else range(3, -1, -1)
        o += [(tb, ks) for ks in kss]
    return o


def qk_mfmas(q, seeded=False):
    out = []
    for x, (tb, ks) in enumerate(qk_order()):
        d = vr(S(q & 1) + 4 * tb)
        c = d if (x % 4 or seeded) else vr(V_C + 4 * tb)
        out.append(f'{MF} {d}, {ar(AK(tb,ks))}, {ar(AQ(q,ks))}, {c}')
    return out


def pv_mfmas(q):
    out = []
    for x in range(18):
        s = x & 1
        d = vr(O(q, x >> 1)) if x < 16 else vr(V_L + 4 * q)
        out.append(f'{MF} {d}, {ar(AV(x))}, {vr(S(q & 1)+8*s)}, {d}')
    return out


def f_exp(b, e):
    return f'v_exp_f32 v{S(b)+e}, v{S(b)+e}'


def f_cvt(b, jj):
    base = S(b) + 8 * (jj >> 2)
    j = jj & 3
    if opt['perm']:
        return f'v_perm_b32 v{base+j}, v{base+2*j+1}, v{base+2*j}, s97'
    return f'v_cvt_pk_bf16_f32 v{base+j}, v{base+2*j}, v{base+2*j+1}'


def sm_fill(q, G):
    b = q & 1
    if G % 2 == 0 and G <= 30:
        return [f_exp(b, (G - 8) // 2)] if G >= 8 else [f_exp(1 - b, 12 + G // 2)]
    if G % 4 == 3:
        return [f_cvt(b, (G - 11) // 4)] if G >= 11 else [f_cvt(1 - b, 6 + G // 4)]
    return []


def rd_k(tb, ks):
    return f'ds_read_b128 {ar(AK(tb,ks))}, v{V_DK} offset:{koff(tb,ks)}'


def rd_c(tb):
    return f'ds_read_b128 {vr(V_C+4*tb)}, v{V_AC} offset:{tb*64}'


def rd_v(x):
    if x < 16:
        return f'ds_read_b128 {ar(AV(x))}, v{V_DS} offset:{16384 + x*1024}'
    return f'ds_read_b128 {ar(AV(x))}, v{V_AW} offset:{(x-16)*256}'


def stamp(p, idx):
    if opt['stamp']:
        p(f's_mem{"" if opt["cyc"] else "real"}time s[{40 + 2*idx}:{41 + 2*idx}]')


QN = ' nt' if opt['qnt'] else ''
KN = ' nt' if opt['kvnt'] else ''
DSC = ['', ' sc1', ' nt', ' sc1 nt', ' sc0 sc1'][opt['kvsc']]
OSC = ['', ' nt', ' sc1', ' sc0 sc1', ' sc1 nt'][opt['ont']]

INIT_A = [f'v_mov_b32 v{8+r}, 0' for r in range(4)] + ['s_nop 1']
INIT_A += [f'v_mfma_f32_32x32x16_bf16 v[{r}:{r+15}], v[8:11], v[8:11], 0' for r in range(128, 256, 16)]
INIT_L = [f'v_mfma_f32_32x32x16_bf16 v[{V_L}:{V_L+15}], v[8:11], v[8:11], 0']


V_QS = 112


def qload(p, q0, q1):
    for q in range(q0, q1):
        p(f's_add_u32 m0, s{S_W8K}, {0x10000 + (q >> 1) * 0x8000 + (q & 1) * 4096}')
        p(f's_xor_b32 s{S_T1}, s{S_ROW}, {q*4096}')
        for x in range(4):
            p(f'buffer_load_dwordx4 v{V_QS+x}, {sr(SRD_Q)}, s{S_T1} offen offset:{x*1024}{QN} lds')


def qfrags(p):
    p('v_and_b32 v12, 15, v0')
    p('v_lshrrev_b32 v13, 4, v0')
    p('v_xor_b32 v13, v13, v12')
    p('v_lshlrev_b32 v12, 8, v12')
    p('v_lshl_add_u32 v12, v13, 4, v12')
    p(f's_add_u32 s{S_T1}, s{S_W8K}, 0x10000')
    p(f'v_add_u32 v12, s{S_T1}, v12')
    for ks in range(1, 4):
        p(f'v_xor_b32 v{12+ks}, {ks*64}, v12')
    return [f'ds_read_b128 {ar(AQ(q,ks))}, v{12+ks} offset:{(q >> 1) * 0x8000 + (q & 1) * 4096}' for q in range(4) for ks in range(4)]


def dma_stage(p, n):
    p(f's_add_u32 m0, s{S_W8K}, {n*32768}')
    p('s_nop 0')
    for k in range(4):
        p(f'buffer_load_dwordx4 v{V_L16}, {sr(SRD_KV)}, s{S_GOFF} offen offset:{k*1024}{DSC} lds')
    p(f's_add_u32 m0, s{S_W8K}, {n*32768 + 4096}')
    p('s_nop 0')
    for k in range(4):
        p(f'buffer_load_dwordx4 v{V_L16B}, {sr(SRD_KV)}, s{S_GOFF} offen offset:{k*1024}{DSC} lds')
    p(f's_add_u32 s{S_GOFF}, s{S_GOFF}, 0x8000')


def aux_loads(p):
    srd(p, SRD_S, K_VS, K_VS + 1, 16384)
    srd(p, SRD_Z, K_VZ, K_VZ + 1, 16384)
    p('v_lshrrev_b32 v17, 2, v0')
    p('v_and_b32 v18, 3, v0')
    p('v_lshlrev_b32 v19, 3, v18')
    p('v_lshl_add_u32 v19, v17, 6, v19')
    p(f's_and_b32 s{S_T0}, s{S_RB}, 0xc0')
    p(f's_lshl_b32 s{S_T0}, s{S_T0}, 6')
    p(f's_lshl_b32 s{S_T1}, s{S_W}, 10')
    p(f's_add_u32 s{S_T0}, s{S_T0}, s{S_T1}')
    p(f'buffer_load_dwordx2 v[120:121], v19, {sr(SRD_S)}, s{S_T0} offen')
    p(f'buffer_load_dwordx2 v[122:123], v19, {sr(SRD_S)}, s{S_T0} offen offset:32')
    p(f'buffer_load_dwordx2 v[124:125], v19, {sr(SRD_Z)}, s{S_T0} offen')
    p(f'buffer_load_dwordx2 v[126:127], v19, {sr(SRD_Z)}, s{S_T0} offen offset:32')


def aux_compute(p):
    A, B, C_, D = 32, 40, 48, 56
    unpack8(p, A, 120)
    unpack8(p, B, 124)
    p(f's_mov_b32 s{S_T0}, 0x007fffff')
    for j in range(8):
        p(f'v_and_b32 v{C_+j}, 0xff800000, v{A+j}')
        p(f'v_add_f32 v{B+j}, {f32hex(float(opt["voff"]))}, v{B+j}')
        p(f'v_and_or_b32 v{A+j}, v{A+j}, s{S_T0}, 1.0')
    for j in range(8):
        p(f'v_mul_f32 v{B+j}, v{B+j}, v{C_+j}')
        p(f'v_log_f32 v{D+j}, v{A+j}')
        p(f'v_rcp_f32 v{A+j}, v{A+j}')
    for j in range(8):
        p(f'v_add_f32 v{D+j}, {f32hex(-float(opt["shift"]) / 2)}, v{D+j}')
    p('v_lshrrev_b32 v17, 2, v0')
    p('v_and_b32 v18, 3, v0')
    p(f's_lshl_b32 s{S_T0}, s{S_W}, 11')
    p(f's_add_u32 s{S_T0}, s{S_T0}, {LDS_LV}')
    p('v_lshlrev_b32 v19, 4, v18')
    p('v_lshl_add_u32 v19, v17, 7, v19')
    p(f'v_add_u32 v19, s{S_T0}, v19')
    p(f'ds_write_b128 v19, {vr(D)}')
    p(f'ds_write_b128 v19, {vr(D+4)} offset:64')
    p(f's_lshl_b32 s{S_T0}, s{S_W}, 12')
    p(f's_add_u32 s{S_T0}, s{S_T0}, {LDS_W}')
    p(f'v_lshl_add_u32 v19, v0, 6, s{S_T0}')
    for row, src in ((0, A), (2, B)):
        hi, lo = 20, 24
        for jj in range(4):
            p(f'v_cvt_pk_bf16_f32 v{hi+jj}, v{src+2*jj}, v{src+2*jj+1}')
        unpack8(p, C_, hi)
        p(f'ds_write_b128 v19, {vr(hi)} offset:{row*16}')
        for j in range(8):
            p(f'v_sub_f32 v{C_+j}, v{src+j}, v{C_+j}')
        for jj in range(4):
            p(f'v_cvt_pk_bf16_f32 v{lo+jj}, v{C_+2*jj}, v{C_+2*jj+1}')
        p(f'ds_write_b128 v19, {vr(lo)} offset:{row*16+16}')
        if row == 0:
            p('s_waitcnt lgkmcnt(0)')


def main():
    p = Prog()
    kn = NAME + '_kernel'
    qa, qb, qc, qd = opt['qa'], opt['qb'], opt['qc'], opt['qd']
    p(f'.globl {kn}\n.p2align 8\n.type {kn},@function\n{kn}:')
    p('s_cmp_ge_u32 s2, 256')
    p('s_cbranch_scc1 Lm_done')
    stamp(p, 0)
    p('s_load_dwordx16 s[64:79], s[0:1], 0')
    p('s_load_dwordx4 s[80:83], s[0:1], 64')
    if opt['cpf'] == 1:
        p('s_getpc_b64 s[4:5]')
        p('v_lshlrev_b32 v12, 6, v0')
        p(f'v_min_u32 v12, Lm_codeend-{kn}-64, v12')
        p('global_load_dword v27, v12, s[4:5]')
    p('v_lshrrev_b32 v12, 6, v0')
    p('v_and_b32 v0, 63, v0')
    p(f'v_readfirstlane_b32 s{S_W}, v12')
    p(f'v_lshlrev_b32 v{V_L16}, 4, v0')
    p(f'v_add_u32 v{V_L16B}, 4096, v{V_L16}')
    if opt['bord']:
        p(f's_and_b32 s{S_RB}, s2, 6')
        p(f's_lshl_b32 s{S_RB}, s{S_RB}, 5')
        p(f's_lshr_b32 s{S_T0}, s2, 3')
        p(f's_lshl_b32 s{S_T0}, s{S_T0}, 1')
        p(f's_add_u32 s{S_RB}, s{S_RB}, s{S_T0}')
        p(f's_and_b32 s{S_T0}, s2, 1')
        p(f's_add_u32 s{S_RB}, s{S_RB}, s{S_T0}')
    else:
        p(f's_and_b32 s{S_RB}, s2, 7')
        p(f's_lshl_b32 s{S_RB}, s{S_RB}, 5')
        p(f's_lshr_b32 s{S_T0}, s2, 3')
        p(f's_add_u32 s{S_RB}, s{S_RB}, s{S_T0}')
    p(f's_mov_b32 s{S_B0}, s{S_RB}')
    p(f's_add_u32 s{S_B1}, s{S_RB}, 1')
    p(f's_lshl_b32 s{S_ROW}, s{S_RB}, 16')
    p(f's_lshl_b32 s{S_T1}, s{S_W}, 14')
    p(f's_add_u32 s{S_ROW}, s{S_ROW}, s{S_T1}')
    if opt['rot']:
        p(f's_and_b32 s{S_T0}, s{S_RB}, 2')
        p(f's_lshr_b32 s{S_T1}, s{S_W}, 1')
        p(f's_or_b32 s{S_T0}, s{S_T0}, s{S_T1}')
        p(f's_lshl_b32 s{S_T0}, s{S_T0}, 12')
        p(f's_or_b32 s{S_ROW}, s{S_ROW}, s{S_T0}')
    p(f's_lshl_b32 s{S_W8K}, s{S_W}, 13')
    p(f's_mov_b32 s{S_PASS}, 0')
    p(f's_mov_b32 s{S_SELF}, 0')
    p(f's_mov_b32 s{S_GAVE}, 0')
    p('v_bfe_u32 v12, v0, 2, 2')
    p('v_lshlrev_b32 v12, 1, v12')
    p('v_mov_b32 v13, 0x78')
    p('v_bfe_u32 v12, v13, v12, 2')
    p('v_lshrrev_b32 v14, 4, v0')
    p('v_xor_b32 v12, v12, v14')
    p('v_and_b32 v15, 15, v0')
    p('v_lshl_add_u32 v12, v15, 2, v12')
    p(f'v_lshlrev_b32 v{V_KP}, 4, v12')
    p(f's_and_b32 s{S_T1}, s{S_RB}, 0xc0')
    p(f's_lshl_b32 s{S_T0}, s{S_T1}, 14')
    p(f's_lshl_b32 s{S_T1}, s{S_T1}, 1')
    p(f's_add_u32 s{S_T1}, s{S_T1}, {WS_EPOCH}')
    p('Lm_prep:')
    p('v_lshrrev_b32 v14, 4, v0')
    p('v_and_b32 v15, 15, v0')
    p('v_xor_b32 v12, v15, v14')
    p('v_lshlrev_b32 v12, 4, v12')
    p(f'v_lshl_add_u32 v{V_QS}, v14, 8, v12')
    for x in range(1, 4):
        p(f'v_xor_b32 v{V_QS+x}, {x*64}, v{V_QS}')
    p(f's_lshl_b32 s16, s{S_B0}, 14')
    p(f's_cmp_ge_u32 s{S_W}, 2')
    p('s_cbranch_scc1 Lm_offv')
    p('v_lshlrev_b32 v12, 1, v14')
    p('v_mov_b32 v13, 0x78')
    p('v_bfe_u32 v12, v13, v12, 2')
    p('v_and_b32 v13, 3, v0')
    p('v_xor_b32 v12, v12, v13')
    p('v_lshlrev_b32 v17, 4, v12')
    p('v_lshrrev_b32 v13, 2, v0')
    p('v_lshlrev_b32 v13, 9, v13')
    p('v_lshl_add_u32 v16, v12, 5, v13')
    p(f's_lshl_b32 s17, s{S_W}, 8')
    p('s_add_u32 s16, s16, s17')
    p('s_movk_i32 s94, 128')
    p('s_movk_i32 s95, 16')
    p(f's_lshr_b32 s96, s{S_B0}, 2')
    p('s_lshl_b32 s96, s96, 1')
    p(f's_add_u32 s96, s96, s{S_W}')
    p('s_lshl_b32 s96, s96, 7')
    p('s_add_u32 s97, s96, 64')
    p('s_branch Lm_offdone')
    p('Lm_offv:')
    p('v_lshlrev_b32 v17, 3, v14')
    p('v_bfe_u32 v12, v0, 2, 2')
    p('v_and_b32 v13, 3, v0')
    p('v_lshlrev_b32 v13, 4, v13')
    p('v_lshl_add_u32 v13, v12, 7, v13')
    p('v_lshl_add_u32 v16, v14, 11, v13')
    p(f's_and_b32 s17, s{S_W}, 1')
    p('s_lshl_b32 s17, s17, 6')
    p('s_add_u32 s16, s16, s17')
    p('s_movk_i32 s94, 1024')
    p('s_movk_i32 s95, 512')
    p(f's_lshl_b32 s96, s{S_B0}, 6')
    p('s_add_u32 s97, s96, 32')
    p('Lm_offdone:')
    for r in (SRD_X, SRD_S, SRD_Z):
        p(f's_mov_b32 s{r+2}, {(4 << 20) if r == SRD_X else 16384:#x}')
        p(f's_mov_b32 s{r+3}, 0x20000')
    p(f's_cmp_ge_u32 s{S_W}, 2')
    p('s_waitcnt lgkmcnt(0)')
    stamp(p, 1)
    p(f's_cselect_b64 s[{SRD_S}:{SRD_S+1}], s[{K_VS}:{K_VS+1}], s[{K_KS}:{K_KS+1}]')
    p(f's_cselect_b64 s[{SRD_Z}:{SRD_Z+1}], s[{K_VZ}:{K_VZ+1}], s[{K_KZ}:{K_KZ+1}]')
    p(f's_cselect_b64 s[{SRD_X}:{SRD_X+1}], s[{K_QV}:{K_QV+1}], s[{K_QK}:{K_QK+1}]')
    for r in (SRD_S, SRD_Z, SRD_X):
        p(f's_and_b32 s{r+1}, s{r+1}, 0xffff')
    p(f'buffer_load_dwordx4 v[96:99], v17, {sr(SRD_S)}, s96 offen')
    p(f'buffer_load_dwordx4 v[100:103], v17, {sr(SRD_S)}, s97 offen')
    p(f'buffer_load_dwordx4 v[104:107], v17, {sr(SRD_Z)}, s96 offen')
    p(f'buffer_load_dwordx4 v[108:111], v17, {sr(SRD_Z)}, s97 offen')
    for a_ in range(2):
        p(f'buffer_load_dwordx4 v[{64+16*a_}:{67+16*a_}], v16, {sr(SRD_X)}, s16 offen{KN}')
        p('s_add_u32 s17, s16, s95')
        p(f'buffer_load_dwordx4 v[{68+16*a_}:{71+16*a_}], v16, {sr(SRD_X)}, s17 offen{KN}')
        p('s_add_u32 s17, s16, s94')
        p(f'buffer_load_dwordx4 v[{72+16*a_}:{75+16*a_}], v16, {sr(SRD_X)}, s17 offen{KN}')
        p('s_add_u32 s17, s17, s95')
        p(f'buffer_load_dwordx4 v[{76+16*a_}:{79+16*a_}], v16, {sr(SRD_X)}, s17 offen{KN}')
        if a_ == 0:
            p('s_add_u32 s16, s16, 8192')
    p(f's_cmp_lg_u32 s{S_SELF}, 0')
    p('s_cbranch_scc1 Lm_havekv')
    p(f's_load_dword s{S_EPOCH}, s[{K_WS}:{K_WS+1}], s{S_T1}')
    p(f's_add_u32 s{SRD_KV}, s{K_WS}, s{S_T0}')
    p(f's_addc_u32 s{SRD_KV+1}, s{K_WS+1}, 0')
    srd(p, SRD_KV, SRD_KV, SRD_KV + 1, 1 << 20)
    p('Lm_havekv:')
    aux_loads(p)
    srd(p, SRD_Q, K_Q, K_Q + 1, 16 << 20)
    qload(p, 0, qa)
    NX = 4 + 4 * qa
    p(f's_and_b32 s16, s{S_B0}, 63')
    p('s_lshr_b32 s17, s16, 1')
    p('s_lshl_b32 s17, s17, 15')
    p(f's_add_u32 s17, s17, s{S_W8K}')
    p('s_and_b32 s16, s16, 1')
    for x in INIT_A:
        p(x)
    p(f's_cmp_ge_u32 s{S_W}, 2')
    p('s_cbranch_scc1 Lm_prepv')
    p('s_lshl_b32 s16, s16, 12')
    p('s_add_u32 s16, s16, s17')
    p(f's_mov_b32 s17, {f32hex(CSCALE)}')
    p(f's_waitcnt vmcnt({8 + NX})')
    for ch in range(2):
        unpack8(p, 32 + 8 * ch, 96 + 4 * ch)
        unpack8(p, 48 + 8 * ch, 104 + 4 * ch)
    for j in range(16):
        p(f'v_mul_f32 v{32+j}, s17, v{32+j}')
    for j in range(16):
        p(f'v_mul_f32 v{48+j}, -v{48+j}, v{32+j}')
    for ps in range(4):
        ch = ps & 1
        p(f's_waitcnt vmcnt({6 - ps + NX})')
        if ps == 3:
            stamp(p, 2)
        r = 64 + ps * 8
        for j in range(8):
            p(f'v_cvt_f32_i32 v{r+j}, v{r+j}')
        for j in range(0, 8, 2):
            p(f'v_pk_fma_f32 {vr(r+j,2)}, {vr(r+j,2)}, {vr(32+8*ch+j,2)}, {vr(48+8*ch+j,2)}')
        for j in range(4):
            p(f'v_cvt_pk_bf16_f32 v{r+j}, v{r+2*j}, v{r+2*j+1}')
        p(f'buffer_store_dwordx4 v[{r}:{r+3}], v{V_L16}, {sr(SRD_KV)}, s16 offen offset:{ps * 1024} sc1')
    p('s_branch Lm_prepdone')
    p('Lm_prepv:')
    p('s_lshl_b32 s16, s16, 10')
    p('s_add_u32 s16, s16, s17')
    p(f's_waitcnt vmcnt({8 + NX})')
    for j in range(8):
        src = 96 + 4 * (j >> 2) + ((j & 3) >> 1)
        if j & 1:
            p(f'v_and_b32 v{32+j}, 0xff800000, v{src}')
        else:
            p(f'v_lshlrev_b32 v{32+j}, 16, v{src}')
            p(f'v_and_b32 v{32+j}, 0xff800000, v{32+j}')
    for j in range(8):
        p(f'v_mul_f32 v{40+j}, {f32hex(float(opt["voff"]))}, v{32+j}')
    for j in range(8):
        p(f's_waitcnt vmcnt({7 - j + NX})')
        if j == 7:
            stamp(p, 2)
        r = 64 + 4 * j
        for db in range(4):
            p(f'v_cvt_f32_i32 v{r+db}, v{r+db}')
        je = j & ~1
        sel = 'op_sel:[0,1,1] op_sel_hi:[1,1,1]' if j & 1 else 'op_sel:[0,0,0] op_sel_hi:[1,0,0]'
        for db in range(0, 4, 2):
            p(f'v_pk_fma_f32 {vr(r+db,2)}, {vr(r+db,2)}, {vr(32+je,2)}, {vr(40+je,2)} {sel}')
        if j & 1:
            for db in range(4):
                p(f'v_cvt_pk_bf16_f32 v{96 + 4*db + (j >> 1)}, v{r - 4 + db}, v{r + db}')
    for db in range(4):
        p(f'buffer_store_dwordx4 v[{96+4*db}:{96+4*db+3}], v{V_L16B if db & 2 else V_L16}, {sr(SRD_KV)}, s16 offen offset:{(db & 1) * 2048} sc1')
    p('Lm_prepdone:')
    p(f's_add_u32 s{S_B0}, s{S_B0}, 1')
    p(f's_cmp_lt_u32 s{S_B0}, s{S_B1}')
    p('s_cbranch_scc1 Lm_prep')
    qload(p, qa, qb)
    srd(p, SRD_O, K_OUT, K_OUT + 1, 16 << 20)
    V_TAG, V_PA, V_PB, V_PD, S_PC = 28, 29, 21, 30, 96
    p(f's_and_b32 s16, s{S_RB}, 0xc0')
    p('s_lshl_b32 s16, s16, 7')
    p(f's_add_u32 s16, s16, {WS_FLAG}')
    p(f's_add_u32 s{SRD_F}, s{K_WS}, s16')
    p(f's_addc_u32 s{SRD_F+1}, s{K_WS+1}, 0')
    srd(p, SRD_F, SRD_F, SRD_F + 1, 8192)
    p(f's_and_b32 s16, s{S_RB}, 63')
    p('s_lshl_b32 s16, s16, 7')
    p(f's_mov_b32 s{S_PC}, 0')
    p(f's_waitcnt vmcnt({4*(qb - qa)}) lgkmcnt(0)')
    stamp(p, 3)
    p(f's_mul_i32 s{S_TAG}, s{S_EPOCH}, 0x9e3779b1')
    p(f's_add_u32 s{S_TAG}, s{S_TAG}, 0x85ebca6b')
    p(f's_or_b32 s17, s{S_W}, s{S_SELF}')
    p(f's_cselect_b32 s{SRD_F+2}, 0, 0x2000')
    p(f's_cselect_b32 s17, 0, s{S_TAG}')
    p(f'v_mov_b32 v{V_TAG}, s17')
    p('s_mov_b64 exec, 1')
    p('s_barrier')
    p(f'buffer_store_dword v{V_TAG}, off, {sr(SRD_F)}, s16 sc1')
    p('s_mov_b64 exec, -1')
    qload(p, qb, qc)
    aux_compute(p)
    if opt['traj'] or opt['stamp']:
        p(f's_add_u32 s88, s{K_WS}, {WS_DIAG}')
        p(f's_addc_u32 s89, s{K_WS+1}, 0')
        srd(p, 88, 88, 89, 1 << 20)
        p('s_lshl_b32 s92, s2, 2')
        p('s_add_u32 s92, s92, s3')
        p('s_lshl_b32 s92, s92, 9')
        p('s_add_u32 s93, s92, 256')
    p(f'v_min_u32 v{V_PA}, {opt["nf"] - 1}, v0')
    p(f'v_lshlrev_b32 v{V_PA}, 7, v{V_PA}')
    POLLA = f'buffer_load_dword v{V_PD}, v{V_PA}, {sr(SRD_F)}, 0 offen sc1'
    POLLB = f'buffer_load_dword v{V_PD}, v{V_PB}, {sr(SRD_F)}, 0 offen sc1'
    TEST = [f'v_cmp_ne_u32 vcc, v{V_PD}, v{V_TAG}']
    if opt['forcetmo']:
        TEST = [f'v_cmp_ne_u32 vcc, 0, v{V_TAG}']

    def spin(name, poll, done):
        p(f'{name}:')
        p(poll)
        p(f's_add_u32 s{S_PC}, s{S_PC}, 1')
        p('s_waitcnt vmcnt(0)')
        for x in TEST:
            p(x)
        p(f's_cbranch_vccz {done}')
        p(f's_cmp_lt_u32 s{S_PC}, {opt["tmo"]}')
        p(f's_cbranch_scc1 {name}')
        p(f's_mov_b32 s{S_GAVE}, 2')
    p(POLLA)
    qr = qfrags(p)
    for x in INIT_L:
        p(x)
    VW, VR_, VS_, X = 22, 26, V_QS, 96
    p('v_and_b32 v17, 15, v0')
    p('v_lshrrev_b32 v18, 4, v0')
    p('v_lshlrev_b32 v19, 2, v18')
    p('v_xor_b32 v19, v19, v17')
    p('v_lshlrev_b32 v17, 8, v17')
    p('s_waitcnt lgkmcnt(0)')
    p(f'v_lshl_add_u32 v{VW}, v19, 4, v17')
    p(f'v_add_u32 v{VW}, s{S_T1}, v{VW}')
    for r in range(1, 4):
        p(f'v_xor_b32 v{VW+r}, {r*16}, v{VW}')
    p(f'v_add_u32 v{VR_}, s{S_T1}, v{V_L16}')
    p(f'v_lshlrev_b32 v{V_PB}, 7, v0')
    p(f'v_mov_b32 v{V_DS}, v{V_L16}')
    p(f'v_mov_b32 v{V_DK}, v{V_KP}')
    p('v_and_b32 v17, 3, v0')
    p(f'v_lshlrev_b32 v{V_AC}, 4, v18')
    p(f'v_add_u32 v{V_AC}, {LDS_LV}, v{V_AC}')
    p('v_lshl_add_u32 v17, v18, 2, v17')
    p(f'v_lshlrev_b32 v{V_AW}, 4, v17')
    p(f'v_add_u32 v{V_AW}, {LDS_W}, v{V_AW}')
    if opt['perm']:
        p('s_mov_b32 s97, 0x07060302')
    if qd > qc:
        p(f's_waitcnt vmcnt({opt["thq"] + 1})')
        qload(p, qc, qd)
    p(f's_mov_b32 s{S_GOFF}, s{S_W8K}')
    p(f's_waitcnt vmcnt({4*(qd - qc)})')
    for x in qr[:4*qc]:
        p(x)
    for x in TEST:
        p(x)
    p('s_cbranch_vccz Lm_got')
    spin('Lm_poll', POLLA, 'Lm_got')
    p('Lm_got:')
    stamp(p, 4)
    p('s_barrier')
    dma_stage(p, 0)
    qload(p, qd, 4)
    if qd > qc:
        p(f's_waitcnt vmcnt({8 + 4*(4 - qd)})')
        for x in qr[4*qc:4*qd]:
            p(x)
    p(f's_mov_b32 s{S_RING}, 0x8000')
    p(f's_add_u32 s{S_DMA}, s{S_W8K}, 0x18000')
    p(f's_mov_b32 s{S_IT}, 1')
    p(f's_add_u32 m0, s{S_W8K}, 0x8000')
    p(f's_waitcnt vmcnt({4*(4 - qd)}) lgkmcnt(0)')
    p('s_barrier')
    stamp(p, 5)
    order = qk_order()
    for tb in range(4):
        p(rd_c(tb))
        for x in range(4):
            p(rd_k(*order[4 * tb + x]))
    stamp(p, 6)
    p('s_waitcnt lgkmcnt(%d)' % (0 if opt['stamp'] else 10))

    def dma(k):
        return f'buffer_load_dwordx4 v{V_L16 if k < 4 else V_L16B}, {sr(SRD_KV)}, s{S_GOFF} offen offset:{(k & 3)*1024}{DSC} lds'

    def emit(mf, table):
        for G, m in enumerate(mf):
            p(m)
            for x in table.get(G, []):
                p(x)
    t = {0: [dma(0)], 3: [dma(1)], 6: [dma(2)], 7: ['s_waitcnt lgkmcnt(0)'], 9: [rd_v(0), rd_v(1)], 13: [rd_v(2), rd_v(3)]}
    for G in range(8, 16):
        t[G] = t.get(G, []) + sm_fill(0, G)
    emit(qk_mfmas(0), t)
    for x in [dma(3), f_exp(0, 4), f_exp(0, 5), rd_v(4), rd_v(5), f_exp(0, 6), f_cvt(0, 2), f_exp(0, 7), f's_add_u32 m0, s{S_W8K}, 0x9000',
              rd_v(6), rd_v(7), f_exp(0, 8), f_cvt(0, 3), f_exp(0, 9), dma(4), f_exp(0, 10), f_cvt(0, 4), f_exp(0, 11), rd_v(8), rd_v(9), f_cvt(0, 5)]:
        p(x)
    t = {1: [rd_v(10), rd_v(11)], 5: [rd_v(12), rd_v(13)], 9: [rd_v(14), rd_v(15)], 13: [rd_v(16), rd_v(17)],
         3: [dma(5)], 7: [dma(6)], 11: [dma(7)], 15: ['s_waitcnt lgkmcnt(8)'], 25: ['s_waitcnt lgkmcnt(0)'],
         12: [f's_add_u32 s{S_GOFF}, s{S_GOFF}, 0x8000'], 14: [f's_add_u32 m0, s{S_W8K}, 0x10000'], 29: [POLLB]}
    if qd <= 2:
        t[16] = ['s_waitcnt vmcnt(12)']
        t[17] = qr[8:10]
        t[21] = qr[10:12]
    for G in range(34):
        t[G] = t.get(G, []) + sm_fill(1, G)
    emit(qk_mfmas(1) + pv_mfmas(0), t)
    t = {1: [f'v_add_u32 v{V_AC}, 256, v{V_AC}', f'v_add_u32 v{V_AW}, 512, v{V_AW}'],
         5: [f'v_add_u32 v{V_DS}, s{S_RING}, v{V_L16}', f'v_add_u32 v{V_DK}, s{S_RING}, v{V_KP}'],
         9: [dma(0)], 13: [dma(1)], 17: [dma(2)], 29: [dma(3)], 30: [f's_add_u32 m0, s{S_W8K}, 0x11000'],
         32: ['s_waitcnt vmcnt(4) lgkmcnt(0)'] + TEST, 33: ['s_cbranch_vccnz Lm_poll2', 'Lm_got2:', 's_barrier']}
    if qd <= 3:
        t[20] = ['s_waitcnt vmcnt(12)']
        t[21] = qr[12:14]
        t[25] = qr[14:16]
    for G in range(34):
        t[G] = t.get(G, []) + sm_fill(2, G)
    emit(qk_mfmas(2) + pv_mfmas(1), t)
    t = {7: [dma(4)], 15: [dma(5)], 23: [dma(6)], 31: [dma(7)], 32: ['s_waitcnt lgkmcnt(10)'], 33: [f's_add_u32 s{S_GOFF}, s{S_GOFF}, 0x8000']}
    for tb in range(4):
        t[8 * tb + 1] = [rd_c(tb), rd_k(*order[4 * tb])]
        t[8 * tb + 3] = [rd_k(*order[4 * tb + 1])]
        t[8 * tb + 5] = [rd_k(*order[4 * tb + 2]), rd_k(*order[4 * tb + 3])]
    for G in range(34):
        t[G] = t.get(G, []) + sm_fill(3, G)
    emit(qk_mfmas(3) + pv_mfmas(2), t)
    pre_end = len(p.l)

    peel, pd = 1, 2
    DMA_AT = {(0, 5): 0, (0, 13): 1, (1, 21): 2, (1, 29): 3, (2, 5): 4, (2, 13): 5, (2, 21): 6, (2, 29): 7}

    def gap(q, G):
        sh = []
        fill = [] if opt['novalu'] else sm_fill(q, G)
        rd = []
        if q == 0 and G >= 17 and G % 4 == 1:
            rd = [rd_v(2 * ((G - 17) // 4) + k) for k in range(2)]
        if q == 1 and G in (1, 5, 9, 13):
            rd = [rd_v(10 + 2 * ((G - 1) // 4) + k) for k in range(2)]
        if q == 3 and G < 32:
            tb, gg = G // 8, G % 8
            if gg == 1:
                rd = [rd_c(tb), rd_k(*order[4 * tb])]
            if gg == 3:
                rd = [rd_k(*order[4 * tb + 1])]
            if gg == 5:
                rd = [rd_k(*order[4 * tb + 2]), rd_k(*order[4 * tb + 3])]
        if not opt['nods']:
            sh += rd
        if q == 0 and G == 7:
            sh.append('s_waitcnt lgkmcnt(0)')
        if q == 1 and G == 15:
            sh.append('s_waitcnt lgkmcnt(8)')
        if q == 1 and G == 25:
            sh.append('s_waitcnt lgkmcnt(0)')
        if q == 3 and G == 32:
            sh.append('s_waitcnt lgkmcnt(10)')
        if q == 0 and G == 4:
            sh.append(f's_mov_b32 m0, s{S_DMA}')
        if q == 2 and G == 4:
            sh.append(f's_add_u32 m0, s{S_DMA}, 4096')
        if (q, G) in DMA_AT and not opt['nodma']:
            sh.append(dma(DMA_AT[(q, G)]))
        if q == 1 and peel:
            if G == 30:
                sh.append(f's_cmp_eq_u32 s{S_IT}, 31')
            if G == 33:
                sh.append('s_cbranch_scc1 Lm_last')
        if q == 2:
            if G == 1:
                fill.append(f'v_add_u32 v{V_AC}, 256, v{V_AC}')
            if G == 9:
                fill.append(f'v_add_u32 v{V_AW}, 512, v{V_AW}')
            if G == 6 and pd == 3:
                sh.append(f's_add_u32 s{S_DMA}, s{S_RING}, s{S_W8K}')
            if G == 14 and pd == 2:
                sh.append(f's_xor_b32 s{S_DMA}, s{S_RING}, 0x10000')
            if G == 16 and pd == 2:
                sh.append(f's_add_u32 s{S_DMA}, s{S_DMA}, s{S_W8K}')
            if G == 25:
                fill.append(f'v_add_u32 v{V_DK}, s{S_RING}, v{V_KP}')
            if G == 8:
                sh.append(f's_add_u32 s{S_RING}, s{S_RING}, 0x8000')
            if G == 10:
                sh.append(f's_and_b32 s{S_RING}, s{S_RING}, 0x1ffff')
            if G == 17:
                fill.append(f'v_add_u32 v{V_DS}, s{S_RING}, v{V_L16}')
            if G == 30:
                sh.append(f's_add_u32 s{S_GOFF}, s{S_GOFF}, 0x8000')
            if G == 12:
                sh.append(f's_add_u32 s{S_IT}, s{S_IT}, 1')
            if G == 32:
                sh.append('s_waitcnt vmcnt(8)')
            if G == 33 and not opt['nobar']:
                sh.append('s_barrier')
            if opt['traj']:
                if G == 0:
                    sh.append('s_memtime s[94:95]')
                if G == 2:
                    sh.append('s_memrealtime s[96:97]')
                if G == 22:
                    sh.append('s_waitcnt lgkmcnt(0)')
                if G == 25:
                    fill += ['v_mov_b32 v12, s94']
                if G == 32:
                    fill += ['v_mov_b32 v14, s92', 'v_mov_b32 v13, s96']
                if G == 33:
                    fill += ['buffer_store_dwordx2 v[12:13], v14, s[88:91], 0 offen', 's_add_u32 s92, s92, 8']
        if q == 3:
            if peel:
                if G == 33:
                    sh.append('s_branch Lm_loop')
            else:
                if G == 30:
                    sh.append(f's_cmp_lt_u32 s{S_IT}, 32')
                if G == 33:
                    sh.append('s_cbranch_scc1 Lm_loop')
        return sh, fill

    if opt['align']:
        p(f'.p2align {opt["align"]}')
    p('Lm_loop:')
    mid = None
    for q in range(4):
        if q == 2:
            mid = len(p.l)
        mf = qk_mfmas(q) + pv_mfmas((q - 1) & 3)
        for G in range(34):
            sh, fill = gap(q, G)
            p(mf[G])
            for x in sh + fill:
                p(x)
    loop_end = len(p.l)
    loop_end2 = loop_end

    def setup():
        return []

    def norm(q, pk):
        o = []
        L = V_L + 4 * q
        lo = (q & 1) * 4096
        o.append(f'v_add_f32 v{L}, v{L}, v{L+1}')
        o.append(f'v_add_f32 v{L+2}, v{L+2}, v{L+3}')
        if opt['eps']:
            o[-2] = f'v_mul_f32 v{L}, {f32hex(1.0/(1.0 + opt["eps"]*1e-3))}, v{L}'
        o.insert(1, f'v_rcp_f32 v{L}, v{L}')
        o.append(f'v_mul_f32 v{L+2}, -v{L+2}, v{L}')
        for wv in range(2):
            for h in range(2):
                for db in range(4 * wv, 4 * wv + 4):
                    r = O(q, db) + 2 * h
                    if pk:
                        o.append(f'v_pk_fma_f32 {vr(r,2)}, {vr(r,2)}, {vr(L,2)}, {vr(L+2,2)} op_sel:[0,0,0] op_sel_hi:[1,0,0]')
                    else:
                        o.append(f'v_fma_f32 v{r}, v{r}, v{L}, v{L+2}')
                        o.append(f'v_fma_f32 v{r+1}, v{r+1}, v{L}, v{L+2}')
                c = 2 * wv + h
                for w in range(4):
                    db, i = 4 * wv + 2 * (w & 1), 2 * h + (w >> 1)
                    o.append(f'v_cvt_pk_bf16_f32 v{X + 4*c + w}, v{O(q,db)+i}, v{O(q,db+1)+i}')
                o.append(f'ds_write_b128 v{VW+c}, {vr(X+4*c)} offset:{lo}')
        for x in range(4):
            o.append(f'ds_read_b128 {vr(O(q,x))}, v{VR_} offset:{lo + x*1024}')
        st = ['s_waitcnt lgkmcnt(0)', f's_xor_b32 s16, s{S_ROW}, {q*4096}']
        if not opt['nost']:
            st += [f'buffer_store_dwordx4 {vr(O(q,x))}, v{VS_+x}, {sr(SRD_O)}, s16 offen offset:{x*1024}{OSC}' for x in range(4)]
        return o, st

    def chain(qs, pk, pending):
        out = []
        for q in qs:
            o, st = norm(q, pk)
            k = 12 if pk else 16
            assert o[k].startswith('ds_write')
            out += o[:k] + pending + o[k:]
            pending = st
        return out, pending

    arrive = Prog()
    arrive(f's_or_b32 s16, s{S_W}, s{S_PASS}')
    arrive(f's_or_b32 s16, s16, s{S_SELF}')
    arrive('s_cbranch_scc1 Lm_noarrive')
    srd(arrive, SRD_F, K_DBG, K_DBG + 1, 256)
    arrive(f's_and_b32 s16, s{S_RB}, 0xc0')
    arrive(f'v_mov_b32 v{V_ARR}, 1')
    arrive('s_mov_b64 exec, 1')
    arrive(f'buffer_atomic_add v{V_ARR}, off, {sr(SRD_F)}, s16 sc0 sc1')
    arrive('s_mov_b64 exec, -1')
    arrive('Lm_noarrive:')
    tailm = pv_mfmas(3)
    tailm = tailm[16:] + tailm[:16]

    def weave(mf, fills, extra, per_gap, start=0):
        for G, m in enumerate(mf):
            p(m)
            fill = fills[G]
            n = 0 if G < start else per_gap(G, fill)
            take = []
            while extra and (n > 0 or extra[0].startswith('s_')):
                x = extra.pop(0)
                take.append(x)
                if not x.startswith('s_'):
                    n -= 1
            for x in fill + take:
                p(x)

    def parts(q):
        o, st = norm(q, True)
        pick = lambda pre: [x for x in o[4:] if x.startswith(pre)]
        return o[:4], pick('v_pk_fma'), pick('v_cvt'), pick('ds_write'), pick('ds_read'), st

    def segment(mf, fills, plan, c, w, r, lumps):
        c, w, r = list(c), list(w), list(r)
        for G, m in enumerate(mf):
            p(m)
            pre, post = [], []
            for ch in plan.get(G, ''):
                if ch == 'c':
                    post.append(c.pop(0))
                else:
                    pre.append((w if ch == 'w' else r).pop(0))
            for x in pre + fills[G] + post + lumps.get(G, []):
                p(x)
        assert not (c or w or r)

    if peel:
        p('Lm_last:')
        stamp(p, 7)
        plan = {5: 'cc', 7: 'c', 9: 'cc', 11: 'w', 13: 'cc', 15: 'c', 17: 'cc', 19: 'w', 21: 'cc', 23: 'w', 25: 'cc', 27: 'c',
                29: 'c', 31: 'w', 32: 'rr', 33: 'rr'}
        h, f, c, w, r, st0 = parts(0)
        segment(qk_mfmas(2) + pv_mfmas(1), [sm_fill(2, G) for G in range(34)], plan, c, w, r,
                {3: [x.text for x in arrive.l] + h + f})
        h, f, c, w, r, st1_ = parts(1)
        segment(qk_mfmas(3) + pv_mfmas(2), [sm_fill(3, G) for G in range(34)], plan, c, w, r, {3: ['s_nop 0'] + h + f + st0})
        for e in range(12, 16):
            p(f_exp(1, e))
        h, f, c, w, r, st2 = parts(2)
        p(f_cvt(1, 6))
        p(f_cvt(1, 7))
        for x in h + f + st1_:
            p(x)
        h3, f3, c3, w3, r3, st3 = parts(3)
        plan = {0: 'cc', 1: 'cc', 2: 'cc', 3: 'wc', 4: 'cc', 5: 'wc', 6: 'cc', 7: 'wc', 8: 'cc', 9: 'c', 11: 'wr', 12: 'rr', 13: 'r'}
        segment(tailm, [[] for _ in tailm], plan, c, w, r, {9: h3[:1], 10: h3[1:2], 13: h3[2:3], 14: h3[3:]})
        o3, _ = norm(3, True)
        for x in st2 + o3[4:] + st3:
            p(x)
        p('s_branch Lm_vote')
    tail2 = Prog()
    e1, pend = chain([0, 1, 2, 3], True, [])
    for x in e1 + pend:
        tail2(x)
    tail2('s_branch Lm_vote')
    p.l.pop()
    p('Lm_vote:')
    stamp(p, 8)
    p(f'v_max3_f32 v12, v{V_L}, v{V_L+4}, v{V_L+8}')
    p(f'v_min3_f32 v13, v{V_L}, v{V_L+4}, v{V_L+8}')
    p(f'v_add_f32 v14, v{V_L}, v{V_L+4}')
    p(f'v_add_f32 v15, v{V_L+8}, v{V_L+12}')
    p(f'v_max_f32 v12, v12, v{V_L+12}')
    p(f'v_min_f32 v13, v13, v{V_L+12}')
    p(f'v_cmp_u_f32 s[{S_BAD}:{S_BAD+1}], v14, v15')
    p(f'v_cmp_le_f32 vcc, {f32hex(2.0**(opt["thr"] + opt["shift"] // 2))}, v12')
    p(f's_or_b64 s[{S_BAD}:{S_BAD+1}], s[{S_BAD}:{S_BAD+1}], vcc')
    p(f'v_cmp_ge_f32 vcc, {f32hex(2.0**(-opt["thr"] + opt["shift"] // 2))}, v13')
    p(f's_or_b64 s[{S_BAD}:{S_BAD+1}], s[{S_BAD}:{S_BAD+1}], vcc')
    p('s_cselect_b32 s17, 1, 0')
    if opt['forcefb']:
        p('s_mov_b32 s17, 1')
    p(f's_or_b32 s17, s17, s{S_GAVE}')
    p('v_mov_b32 v14, s17')
    p(f's_lshl_b32 s18, s{S_W}, 2')
    p(f's_add_u32 s18, s18, {LDS_VOTE}')
    p('v_mov_b32 v15, s18')
    p('ds_write_b32 v15, v14')
    p(f'v_mov_b32 v14, {LDS_VOTE}')
    p('s_waitcnt lgkmcnt(0)')
    p('s_barrier')
    p('ds_read_b128 v[16:19], v14')
    p('s_waitcnt lgkmcnt(0)')
    p('v_or_b32 v16, v16, v17')
    p('v_or3_b32 v16, v16, v18, v19')
    p('s_nop 0')
    p('v_readfirstlane_b32 s17, v16')
    p(f's_cmp_gt_u32 s17, s{S_PASS}')
    p('s_cbranch_scc1 Lm_redo')
    p(f's_cmp_lg_u32 s{S_W}, 0')
    p('s_cbranch_scc1 Lm_noepoch')
    p('s_waitcnt vmcnt(%d)' % (0 if opt['nost'] else 16))
    p(f'v_readfirstlane_b32 s17, v{V_ARR}')
    p('s_cmp_lg_u32 s17, 63')
    p('s_cbranch_scc1 Lm_noepoch')
    p(f's_add_u32 s{SRD_F}, s{K_WS}, {WS_EPOCH}')
    p(f's_addc_u32 s{SRD_F+1}, s{K_WS+1}, 0')
    srd(p, SRD_F, SRD_F, SRD_F + 1, 512)
    p(f's_and_b32 s16, s{S_RB}, 0xc0')
    p('s_lshl_b32 s16, s16, 1')
    p(f'v_mov_b32 v12, s{S_TAG}')
    p('s_mov_b64 exec, 1')
    p(f'buffer_store_dword v12, off, {sr(SRD_F)}, s16')
    p('s_mov_b64 exec, -1')
    p('Lm_noepoch:')
    if opt['stamp']:
        p('s_waitcnt vmcnt(0)')
        stamp(p, 9)
        p('s_waitcnt lgkmcnt(0)')
        if opt['spin_b']:
            p(f's_cmp_lg_u32 s2, {opt["spin_wg"]}')
            p('s_cbranch_scc1 Lm_nospin')
            p('s_cmp_lg_u32 s3, 0')
            p('s_cbranch_scc1 Lm_nospin')
            p(f's_sub_u32 s16, s{40+2*opt["spin_b"]}, s{40+2*opt["spin_a"]}')
            p('s_lshl_b32 s16, s16, 2')
            p('s_min_u32 s16, s16, 50000')
            p('s_add_u32 s16, s16, 500')
            p('Lm_spin:')
            p('s_memrealtime s[94:95]')
            p('s_waitcnt lgkmcnt(0)')
            p('s_sub_u32 s17, s94, s58')
            p('s_cmp_lt_u32 s17, s16')
            p('s_cbranch_scc1 Lm_spin')
            p('Lm_nospin:')
        p(f's_mov_b32 s60, s{S_PC}')
        p('v_mov_b32 v12, s93')
        for k in range(11):
            p(f'v_mov_b32 v13, s{40+2*k}')
            p(f'buffer_store_dword v13, v12, s[88:91], 0 offen offset:{4*k}')
    p('Lm_done:')
    p('s_endpgm')
    p('Lm_codeend:')
    epi_end = len(p.l)

    spin('Lm_poll2', POLLB, 'Lm_got2')
    p('s_branch Lm_got2')
    p('Lm_redo:')
    p('s_waitcnt vmcnt(0) lgkmcnt(0)')
    p('s_barrier')
    p('s_cmp_lt_u32 s17, 2')
    p('s_cbranch_scc1 Lm_truemax')
    p(f's_mov_b32 s{S_SELF}, 1')
    p(f's_mov_b32 s{S_GAVE}, 0')
    p(f's_and_b32 s{S_B0}, s{S_RB}, 0xc0')
    p(f's_add_u32 s{S_B1}, s{S_B0}, 64')
    p('s_branch Lm_prep')

    p('Lm_truemax:')
    p(f's_mov_b32 s{S_PASS}, 1')
    for x in INIT_A + INIT_L:
        p(x)
    for q in range(4):
        p(f'v_mov_b32 v{V_M+q}, 0xff800000')
    p(f'v_mov_b32 v{V_DS}, v{V_L16}')
    p(f'v_mov_b32 v{V_DK}, v{V_KP}')

    def sync_stage(label):
        p(f's_mov_b32 s{S_GOFF}, s{S_W8K}')
        p(f's_mov_b32 s{S_IT}, 0')
        p(f'{label}:')
        p('s_barrier')
        dma_stage(p, 0)
        p('s_waitcnt vmcnt(0)')
        p('s_barrier')
        for tb, ks in order:
            p(rd_k(tb, ks))
    sync_stage('Lm_fa')
    p('s_waitcnt lgkmcnt(0)')
    for q in range(4):
        for r in range(16):
            p(f'v_mov_b32 v{S(q & 1)+r}, 0')
        p('s_nop 1')
        for m in qk_mfmas(q, seeded=True):
            p(m)
        p('s_nop 7')
        for r in range(0, 16, 2):
            p(f'v_max3_f32 v{V_M+q}, v{S(q & 1)+r}, v{S(q & 1)+r+1}, v{V_M+q}')
    p(f's_add_u32 s{S_IT}, s{S_IT}, 1')
    p(f's_cmp_lt_u32 s{S_IT}, 32')
    p('s_cbranch_scc1 Lm_fa')
    for sw in ('v_permlane32_swap_b32', 'v_permlane16_swap_b32'):
        for q in range(4):
            p(f'v_mov_b32 v{V_T+q}, v{V_M+q}')
        for q in range(4):
            p(f'{sw} v{V_T+q}, v{V_M+q}')
        for q in range(4):
            p(f'v_max_f32 v{V_M+q}, v{V_T+q}, v{V_M+q}')
    p(f'v_subrev_u32 v{V_AC}, {(31 if peel else 32)*256}, v{V_AC}')
    p(f'v_subrev_u32 v{V_AW}, {(31 if peel else 32)*512}, v{V_AW}')
    sync_stage('Lm_fb')
    p('s_waitcnt lgkmcnt(0)')
    for tb in range(4):
        p(rd_c(tb))
    for x in range(18):
        if x == 8:
            p('s_waitcnt lgkmcnt(0)')
        p(rd_v(x))
    p('s_waitcnt lgkmcnt(0)')
    for q in range(4):
        for r in range(16):
            p(f'v_sub_f32 v{S(q & 1)+r}, v{V_C+r}, v{V_M+q}')
        p('s_nop 1')
        for m in qk_mfmas(q, seeded=True):
            p(m)
        p('s_nop 7')
        for e in range(16):
            p(f_exp(q & 1, e))
        for jj in range(8):
            p(f_cvt(q & 1, jj))
        p('s_nop 1')
        for m in pv_mfmas(q):
            p(m)
    p(f'v_add_u32 v{V_AC}, 256, v{V_AC}')
    p(f'v_add_u32 v{V_AW}, 512, v{V_AW}')
    p(f's_add_u32 s{S_IT}, s{S_IT}, 1')
    p(f's_cmp_lt_u32 s{S_IT}, 32')
    p('s_cbranch_scc1 Lm_fb')
    p('s_nop 7')
    p.extend(tail2)
    seq = p.l[:loop_end] + p.l[pre_end:mid] + p.l[loop_end2:epi_end]
    probs = check_hazards(seq, 'main') + check_hazards(p.l[epi_end:], 'rare')
    for x in probs:
        print('HAZARD', x, file=sys.stderr)
    return p


def kd(name, nv, acc, ns):
    return f"""
.amdhsa_kernel {name}
  .amdhsa_next_free_vgpr {nv}
  .amdhsa_next_free_sgpr {ns}
  .amdhsa_accum_offset {acc}
  .amdhsa_group_segment_fixed_size 0
  .amdhsa_kernarg_size 80
  .amdhsa_user_sgpr_count 2
  .amdhsa_user_sgpr_kernarg_segment_ptr 1
  .amdhsa_system_sgpr_workgroup_id_x 1
  .amdhsa_float_denorm_mode_32 3
.end_amdhsa_kernel
"""


if __name__ == '__main__':
    pm = main()
    txt = HEADER + pm.text() + '.section .rodata,"a"\n.p2align 6' + kd(NAME + '_kernel', 456, 256, 102)
    open(sys.argv[1], 'w').write(txt)
```

```python
import re


def regs_of(op):
    op = op.strip()
    if op.startswith('-'):
        op = op[1:]
    if op.startswith('abs(') or op.startswith('|'):
        op = op.replace('abs(', '').replace(')', '').replace('|', '')
    m = re.fullmatch(r'([vas])\[(\d+):(\d+)\]', op)
    if m:
        return [(m.group(1), i) for i in range(int(m.group(2)), int(m.group(3)) + 1)]
    m = re.fullmatch(r'([vas])(\d+)', op)
    if m:
        return [(m.group(1), int(m.group(2)))]
    if op == 'vcc':
        return [('s', 'vcc')]
    if op == 'm0':
        return [('s', 'm0')]
    if op == 'exec':
        return [('s', 'exec')]
    return []


TRANS = ('v_exp_f32', 'v_log_f32', 'v_rcp_f32', 'v_rsq_f32', 'v_sqrt_f32')


class I:
    def __init__(self, text):
        self.text = text
        t = text.split(';')[0].strip()
        self.is_label = t.endswith(':')
        self.is_dir = t.startswith('.') and not self.is_label
        self.empty = (t == '')
        self.op = t.split()[0] if t else ''
        rest = t[len(self.op):].strip()
        ops = [o.strip() for o in re.split(r',(?![^\[]*\])', rest)] if rest else []
        if ops:
            ops[-1] = ops[-1].split()[0] if ops[-1] else ops[-1]
        self.ops = ops
        self.w, self.r = [], []
        self.rc = []
        op = self.op
        self.kind = 'other'
        if self.is_label or self.is_dir or self.empty:
            self.kind = 'none'
        elif op.startswith('v_smfmac'):
            self.kind = 'mfma'
            self.w = regs_of(ops[0])
            self.rab = regs_of(ops[1]) + regs_of(ops[2]) + regs_of(ops[3])
            self.rc = regs_of(ops[0])
            self.r = self.rab + self.rc
            self.passes = 8 if '32x32' in op else 4
        elif op.startswith('v_mfma'):
            self.kind = 'mfma'
            self.w = regs_of(ops[0])
            self.rab = regs_of(ops[1]) + regs_of(ops[2])
            self.rc = regs_of(ops[3])
            self.r = self.rab + self.rc
            self.passes = 8 if '32x32' in op else 4
        elif op.startswith('v_'):
            self.kind = 'valu'
            base = op.replace('_e32', '').replace('_e64', '')
            self.trans = base in TRANS
            if base.startswith('v_cmp'):
                self.w = regs_of(ops[0])
                self.r = sum((regs_of(o) for o in ops[1:]), [])
            elif base.startswith('v_permlane'):
                self.w = regs_of(ops[0]) + regs_of(ops[1])
                self.r = self.w
            else:
                self.w = regs_of(ops[0])
                self.r = sum((regs_of(o) for o in ops[1:]), [])
                if base.startswith('v_fmac') or base.startswith('v_dot2c') or base.endswith('_dpp'):
                    self.r += self.w
        elif op.startswith('ds_'):
            self.kind = 'ds'
            if op.startswith('ds_read') or 'rtn' in op or 'permute' in op:
                self.w = regs_of(ops[0])
                self.r = sum((regs_of(o) for o in ops[1:]), [])
            else:
                self.r = sum((regs_of(o) for o in ops), [])
        elif op.startswith('buffer_') or op.startswith('global_'):
            self.kind = 'vmem'
            self.lds = (' lds' in t) or ('_lds_' in op)
            if 'load' in op and not self.lds:
                self.w = regs_of(ops[0])
                self.r = sum((regs_of(o) for o in ops[1:]), [])
            else:
                self.r = sum((regs_of(o) for o in ops), [])
                if self.lds:
                    self.r.append(('s', 'm0'))
        elif op.startswith('s_'):
            self.kind = 'salu'
            if op in ('s_nop', 's_waitcnt', 's_barrier', 's_endpgm', 's_setprio', 's_sleep') or \
                    op.startswith('s_cbranch') or op == 's_branch' or op.startswith('s_cmp'):
                self.r = sum((regs_of(o) for o in ops), [])
            else:
                self.w = regs_of(ops[0])
                self.r = sum((regs_of(o) for o in ops[1:]), [])

    def states(self):
        if self.kind == 'none':
            return 0
        if self.op == 's_nop':
            return int(self.ops[0], 0) + 1
        return 1


def check_hazards(seq, name=''):
    probs = []
    ins = [i for i in seq if i.kind != 'none']
    n = len(ins)
    for a in range(n):
        p = ins[a]
        dist = 0
        for b in range(a + 1, min(n, a + 24)):
            c = ins[b]
            need = 0
            pw = set(p.w)
            if p.kind == 'mfma':
                P = p.passes
                big = {2: 5, 4: 8, 8: 12, 16: 20}[P]
                if c.kind == 'mfma':
                    if pw & set(c.rab):
                        need = big
                    if pw & set(c.rc) and not (c.rc == p.w and c.passes == P):
                        need = max(need, {2: 4, 4: 6, 8: 10, 16: 18}[P])
                    if pw & set(c.w) and not (c.rc == p.w and c.passes == P):
                        need = max(need, {2: 4, 4: 6, 8: 10, 16: 18}[P])
                elif c.kind in ('valu', 'ds', 'vmem'):
                    if pw & (set(c.r) | set(c.w)):
                        need = big
                    if c.kind == 'valu' and set(p.rc) & set(c.w):
                        need = max(need, {2: 1, 4: 3, 8: 7, 16: 15}[P])
            elif p.kind == 'valu':
                sw = {x for x in pw if x[0] == 's'}
                vw = pw - sw
                if c.kind == 'mfma' and vw & set(c.r):
                    need = 2
                if c.kind == 'valu':
                    if p.trans and not c.trans and vw & set(c.r):
                        need = max(need, 1)
                    if c.op.startswith('v_permlane') and vw & set(c.r):
                        need = max(need, 2)
                    if c.op.startswith('v_readfirstlane') or c.op.startswith('v_readlane'):
                        if vw & set(c.r):
                            need = max(need, 1)
                    if sw & set(c.r):
                        need = max(need, 2)
                    if 'dpp' in c.text or 'row_' in c.text or 'quad_perm' in c.text:
                        if vw & set(c.r):
                            need = max(need, 2)
                if c.kind == 'vmem' and sw & set(c.r):
                    need = max(need, 5)
                if p.trans and c.kind in ('ds', 'vmem') and vw & set(c.r):
                    need = max(need, 1)
            elif p.kind == 'salu':
                if ('s', 'm0') in pw and c.kind == 'vmem' and c.lds:
                    need = 1
            elif p.kind == 'vmem':
                if 'store' in p.op and ('x4' in p.op or 'x3' in p.op):
                    data = set(regs_of(p.ops[0])) if p.op.startswith('buffer') else set(regs_of(p.ops[1]))
                    if data & set(c.w):
                        need = 2
            if need > dist:
                probs.append(f'{name}: need {need} have {dist}: [{p.text.strip()}] -> [{c.text.strip()}]')
            dist += c.states()
            if dist >= 20:
                break
    return probs


class Prog:
    def __init__(self):
        self.l = []

    def __call__(self, text):
        for line in text.split('\n'):
            if line.strip():
                self.l.append(I(line.strip()))
        return self

    def extend(self, other):
        self.l.extend(other.l if isinstance(other, Prog) else other)

    def text(self):
        out = []
        for i in self.l:
            if i.is_label or i.is_dir:
                out.append(i.text)
            else:
                out.append('    ' + i.text)
        return '\n'.join(out) + '\n'
```

```python
import sys, math, struct
from asmlib import Prog, I, check_hazards

NAME = 'standalone__kv_cache_quant_int4_int2_kv_with_per_channel_or_per_token_scales__prompt'
opt = dict(stamp=0, cyc=0, thr=48, nodma=0, nods=0, novalu=0, nobar=0, snake=1, traj=0, tmo=4096, forcetmo=0, forcefb=0,
           qnt=0, kvnt=0, ont=1, qa=1, qb=1, qc=2, qd=3, thq=4, nf=6, nost=0, eps=0, perm=0, lnt=0, voff=16, shift=11, kvsc=1,
           spin_a=0, spin_b=0, spin_wg=100, bord=1, cpf=1, align=6, rot=0, tst=0, tail=0, sg=4, split=0, sa=9, sb=23, sc=31, sd=32, dm=0, nom0=0, m0g=4, novm=0, wg=31, tlb=0, auxe=0, pdl=0)
for a in sys.argv[2:]:
    k, v = a.split('=')
    assert k in opt, k
    opt[k] = int(v, 0)


def f32hex(x):
    return '0x%08x' % struct.unpack('<I', struct.pack('<f', x))[0]


CSCALE = math.log2(math.e) / math.sqrt(128.0)
MF = 'v_mfma_f32_16x16x32_bf16'
LDS_LV, LDS_W, LDS_VOTE, LDS_SYNC, LDS_SIZE = 0x20000, 0x22000, 0x26000, 0x26100, 0x26500
WS_FLAG, WS_EPOCH, WS_DIAG = 0x400000, 0x420000, 0x800000

HEADER = f"""; KIVI-style int4 KV-cache attention (prefill, GQA 32q/4kv, S=2048, D=128), gfx950.
; @launch grid=(256,1,1) block=(256,1,1) lds={LDS_SIZE}
.amdgcn_target "amdgcn-amd-amdhsa--gfx950"
.text
"""

S_WG, S_W = 2, 3
SRD_Q, SRD_KV, SRD_O, SRD_X, SRD_S, SRD_Z, SRD_F, SRD_D = 4, 8, 12, 20, 24, 28, 84, 88
S_GOFF, S_RING, S_IT, S_W8K = 16, 17, 18, 19
S_ROW, S_T0, S_T1, S_PASS, S_DMA, S_RB = 32, 33, 34, 35, 36, 37
S_BAD = 38
S_SELF, S_B0, S_B1 = 61, 62, 63
K_Q, K_QK, K_QV, K_KS, K_KZ, K_VS, K_VZ, K_OUT, K_DBG, K_WS = 64, 66, 68, 70, 72, 74, 76, 78, 80, 82
S_EPOCH, S_TAG, S_GAVE, S_BLK = 98, 99, 100, 101

V_L16, V_L16B, V_DS, V_DK, V_AC, V_ARR, V_AW = 1, 2, 3, 4, 5, 6, 7
V_IDX = 20
V_SW, V_SR, V_SI, V_SD = 116, 117, 118, 119
V_KP = 31
V_M = 8
V_T = 12
V_C = 32
V_L = 48


def srd(p, s, lo, hi, nbytes):
    if lo != s:
        p(f's_mov_b32 s{s}, s{lo}')
    p(f's_and_b32 s{s+1}, s{hi}, 0xffff')
    p(f's_mov_b32 s{s+2}, {nbytes:#x}')
    p(f's_mov_b32 s{s+3}, 0x20000')


def sr(s):
    return f's[{s}:{s+3}]'


def unpack8(p, dst, src):
    for j in range(8):
        if j & 1:
            p(f'v_and_b32 v{dst+j}, 0xffff0000, v{src + (j >> 1)}')
        else:
            p(f'v_lshlrev_b32 v{dst+j}, 16, v{src + (j >> 1)}')


def S(b):
    return 64 + 16 * b


def O(q, db):
    return 128 + 32 * q + 4 * db


def AQ(q, ks):
    return 16 * q + 4 * ks


def AK(tb, ks):
    return 64 + 16 * tb + 4 * ks


def AV(x):
    return 128 + 4 * x


def koff(tb, ks):
    return (ks >> 1) * 8192 + (tb >> 1) * 4096 + (tb & 1) * 2048 + (ks & 1) * 1024


def vr(r, n=4):
    return f'v[{r}:{r+n-1}]'


def ar(r, n=4):
    return f'a[{r}:{r+n-1}]'


def qk_order():
    o = []
    for tb in range(4):
        kss = range(4) if (tb % 2 == 0 or not opt['snake']) else range(3, -1, -1)
        o += [(tb, ks) for ks in kss]
    return o


def qk_mfmas(q, seeded=False):
    out = []
    for x, (tb, ks) in enumerate(qk_order()):
        d = vr(S(q & 1) + 4 * tb)
        c = d if (x % 4 or seeded) else vr(V_C + 4 * tb)
        out.append(f'{MF} {d}, {ar(AK(tb,ks))}, {ar(AQ(q,ks))}, {c}')
    return out


def pv_mfmas(q):
    out = []
    for x in range(16):
        s = x & 1
        d = vr(O(q, x >> 1))
        out.append(f'{MF} {d}, {ar(AV(x))}, {vr(S(q & 1)+4*s)}, {d}')
    out.append(f'v_smfmac_f32_16x16x64_bf16 {vr(V_L+4*q)}, {ar(AV(16))}, {vr(S(q & 1), 8)}, v{V_IDX}')
    return out


def f_exp(b, e):
    return f'v_exp_f32 v{S(b)+e}, v{S(b)+e}'


def f_cvt(b, jj):
    base, j = S(b), jj
    if opt['perm']:
        return f'v_perm_b32 v{base+j}, v{base+2*j+1}, v{base+2*j}, s97'
    return f'v_cvt_pk_bf16_f32 v{base+j}, v{base+2*j}, v{base+2*j+1}'


def sm_fill(q, G):
    b = q & 1
    if G % 2 == 0 and G <= 30:
        return [f_exp(b, (G - 8) // 2)] if G >= 8 else [f_exp(1 - b, 12 + G // 2)]
    if G % 4 == 3:
        return [f_cvt(b, (G - 11) // 4)] if G >= 11 else [f_cvt(1 - b, 6 + G // 4)]
    return []


def rd_k(tb, ks):
    return f'ds_read_b128 {ar(AK(tb,ks))}, v{V_DK} offset:{koff(tb,ks)}'


def rd_c(tb):
    return f'ds_read_b128 {vr(V_C+4*tb)}, v{V_AC} offset:{tb*64}'


def rd_v(x):
    if x < 16:
        return f'ds_read_b128 {ar(AV(x))}, v{V_DS} offset:{16384 + x*1024}'
    return f'ds_read_b128 {ar(AV(x))}, v{V_AW}'


def stamp(p, idx):
    if opt['stamp']:
        p(f's_mem{"" if opt["cyc"] else "real"}time s[{40 + 2*idx}:{41 + 2*idx}]')


QN = ' nt' if opt['qnt'] else ''
KN = ' nt' if opt['kvnt'] else ''
DSC = ['', ' sc1', ' nt', ' sc1 nt', ' sc0 sc1'][opt['kvsc']]
OSC = ['', ' nt', ' sc1', ' sc0 sc1', ' sc1 nt'][opt['ont']]

INIT_A = [f'v_mov_b32 v{8+r}, 0' for r in range(4)] + ['s_nop 1']
INIT_A += [f'v_mfma_f32_32x32x16_bf16 v[{r}:{r+15}], v[8:11], v[8:11], 0' for r in range(128, 256, 16)]
INIT_L = [f'v_mfma_f32_32x32x16_bf16 v[{V_L}:{V_L+15}], v[8:11], v[8:11], 0']


V_QS = 112


def qload(p, q0, q1):
    for q in range(q0, q1):
        p(f's_add_u32 m0, s{S_W8K}, {0x10000 + (q >> 1) * 0x8000 + (q & 1) * 4096}')
        p(f's_xor_b32 s{S_T1}, s{S_ROW}, {q*4096}')
        for x in range(4):
            p(f'buffer_load_dwordx4 v{V_QS+x}, {sr(SRD_Q)}, s{S_T1} offen offset:{x*1024}{QN} lds')


def qfrags(p):
    p('v_and_b32 v12, 15, v0')
    p('v_lshrrev_b32 v13, 4, v0')
    p('v_xor_b32 v13, v13, v12')
    p('v_lshlrev_b32 v12, 8, v12')
    p('v_lshl_add_u32 v12, v13, 4, v12')
    p(f's_add_u32 s{S_T1}, s{S_W8K}, 0x10000')
    p(f'v_add_u32 v12, s{S_T1}, v12')
    for ks in range(1, 4):
        p(f'v_xor_b32 v{12+ks}, {ks*64}, v12')
    return [f'ds_read_b128 {ar(AQ(q,ks))}, v{12+ks} offset:{(q >> 1) * 0x8000 + (q & 1) * 4096}' for q in range(4) for ks in range(4)]


def dma_stage(p, n):
    p(f's_add_u32 m0, s{S_W8K}, {n*32768}')
    p('s_nop 0')
    for k in range(4):
        p(f'buffer_load_dwordx4 v{V_L16}, {sr(SRD_KV)}, s{S_GOFF} offen offset:{k*1024}{DSC} lds')
    p(f's_add_u32 m0, s{S_W8K}, {n*32768 + 4096}')
    p('s_nop 0')
    for k in range(4):
        p(f'buffer_load_dwordx4 v{V_L16B}, {sr(SRD_KV)}, s{S_GOFF} offen offset:{k*1024}{DSC} lds')
    p(f's_add_u32 s{S_GOFF}, s{S_GOFF}, 0x8000')


def aux_loads(p):
    srd(p, SRD_S, K_VS, K_VS + 1, 16384)
    srd(p, SRD_Z, K_VZ, K_VZ + 1, 16384)
    p('v_lshrrev_b32 v17, 2, v0')
    p('v_and_b32 v18, 3, v0')
    p('v_lshlrev_b32 v19, 3, v18')
    p('v_lshl_add_u32 v19, v17, 6, v19')
    p(f's_and_b32 s{S_T0}, s{S_RB}, 0xc0')
    p(f's_lshl_b32 s{S_T0}, s{S_T0}, 6')
    p(f's_lshl_b32 s{S_T1}, s{S_W}, 10')
    p(f's_add_u32 s{S_T0}, s{S_T0}, s{S_T1}')
    p(f'buffer_load_dwordx2 v[120:121], v19, {sr(SRD_S)}, s{S_T0} offen')
    p(f'buffer_load_dwordx2 v[122:123], v19, {sr(SRD_S)}, s{S_T0} offen offset:32')
    p(f'buffer_load_dwordx2 v[124:125], v19, {sr(SRD_Z)}, s{S_T0} offen')
    p(f'buffer_load_dwordx2 v[126:127], v19, {sr(SRD_Z)}, s{S_T0} offen offset:32')


def aux_compute(p):
    A, B, C_, D = 32, 40, 48, 56
    unpack8(p, A, 120)
    unpack8(p, B, 124)
    p(f's_mov_b32 s{S_T0}, 0x007fffff')
    for j in range(8):
        p(f'v_and_b32 v{C_+j}, 0xff800000, v{A+j}')
        p(f'v_add_f32 v{B+j}, {f32hex(float(opt["voff"]))}, v{B+j}')
        p(f'v_and_or_b32 v{A+j}, v{A+j}, s{S_T0}, 1.0')
    for j in range(8):
        p(f'v_mul_f32 v{B+j}, v{B+j}, v{C_+j}')
        p(f'v_log_f32 v{D+j}, v{A+j}')
        p(f'v_rcp_f32 v{A+j}, v{A+j}')
    for j in range(8):
        p(f'v_add_f32 v{D+j}, {f32hex(-float(opt["shift"]) / 2)}, v{D+j}')
    p('v_lshrrev_b32 v17, 2, v0')
    p('v_and_b32 v18, 3, v0')
    p(f's_lshl_b32 s{S_T0}, s{S_W}, 11')
    p(f's_add_u32 s{S_T0}, s{S_T0}, {LDS_LV}')
    p('v_lshlrev_b32 v19, 4, v18')
    p('v_lshl_add_u32 v19, v17, 7, v19')
    p(f'v_add_u32 v19, s{S_T0}, v19')
    p(f'ds_write_b128 v19, {vr(D)}')
    p(f'ds_write_b128 v19, {vr(D+4)} offset:64')
    p(f's_lshl_b32 s{S_T0}, s{S_W}, 12')
    p(f's_add_u32 s{S_T0}, s{S_T0}, {LDS_W}')
    p('v_lshrrev_b32 v17, 1, v0')
    p('v_and_b32 v18, 1, v0')
    p('v_lshlrev_b32 v18, 3, v18')
    p('v_lshl_add_u32 v19, v17, 7, v18')
    p(f'v_add_u32 v19, s{S_T0}, v19')
    pos = [0, 2, 1, 3]
    for row, src in ((0, A), (2, B)):
        hi, lo = 20, 24
        for jj in range(4):
            p(f'v_cvt_pk_bf16_f32 v{hi+pos[jj]}, v{src+2*jj}, v{src+2*jj+1}')
        for j in range(8):
            if j & 1:
                p(f'v_and_b32 v{C_+j}, 0xffff0000, v{hi + pos[j >> 1]}')
            else:
                p(f'v_lshlrev_b32 v{C_+j}, 16, v{hi + pos[j >> 1]}')
        p(f'ds_write2_b64 v19, {vr(hi,2)}, {vr(hi+2,2)} offset0:{row*2} offset1:{row*2+8}')
        for j in range(8):
            p(f'v_sub_f32 v{C_+j}, v{src+j}, v{C_+j}')
        for jj in range(4):
            p(f'v_cvt_pk_bf16_f32 v{lo+pos[jj]}, v{C_+2*jj}, v{C_+2*jj+1}')
        p(f'ds_write2_b64 v19, {vr(lo,2)}, {vr(lo+2,2)} offset0:{row*2+2} offset1:{row*2+10}')
        if row == 0:
            p('s_waitcnt lgkmcnt(0)')


def main():
    p = Prog()
    kn = NAME + '_kernel'
    qa, qb, qc, qd = opt['qa'], opt['qb'], opt['qc'], opt['qd']
    p(f'.globl {kn}\n.p2align 8\n.type {kn},@function\n{kn}:')
    p('s_cmp_ge_u32 s2, 256')
    p('s_cbranch_scc1 Lm_done')
    stamp(p, 0)
    p('s_load_dwordx16 s[64:79], s[0:1], 0')
    p('s_load_dwordx4 s[80:83], s[0:1], 64')
    if opt['cpf'] == 1:
        p('s_getpc_b64 s[4:5]')
        p('v_lshlrev_b32 v12, 6, v0')
        p(f'v_min_u32 v12, Lm_codeend-{kn}-64, v12')
        p('global_load_dword v27, v12, s[4:5]')
    p('v_lshrrev_b32 v12, 6, v0')
    p('v_and_b32 v0, 63, v0')
    p(f'v_readfirstlane_b32 s{S_W}, v12')
    p(f'v_lshlrev_b32 v{V_L16}, 4, v0')
    p(f'v_add_u32 v{V_L16B}, 4096, v{V_L16}')
    if opt['bord']:
        p(f's_and_b32 s{S_RB}, s2, 6')
        p(f's_lshl_b32 s{S_RB}, s{S_RB}, 5')
        p(f's_lshr_b32 s{S_T0}, s2, 3')
        p(f's_lshl_b32 s{S_T0}, s{S_T0}, 1')
        p(f's_add_u32 s{S_RB}, s{S_RB}, s{S_T0}')
        p(f's_and_b32 s{S_T0}, s2, 1')
        p(f's_add_u32 s{S_RB}, s{S_RB}, s{S_T0}')
    else:
        p(f's_and_b32 s{S_RB}, s2, 7')
        p(f's_lshl_b32 s{S_RB}, s{S_RB}, 5')
        p(f's_lshr_b32 s{S_T0}, s2, 3')
        p(f's_add_u32 s{S_RB}, s{S_RB}, s{S_T0}')
    p(f's_mov_b32 s{S_B0}, s{S_RB}')
    p(f's_add_u32 s{S_B1}, s{S_RB}, 1')
    p(f's_lshl_b32 s{S_ROW}, s{S_RB}, 16')
    p(f's_lshl_b32 s{S_T1}, s{S_W}, 14')
    p(f's_add_u32 s{S_ROW}, s{S_ROW}, s{S_T1}')
    if opt['rot']:
        p(f's_and_b32 s{S_T0}, s{S_RB}, 2')
        p(f's_lshr_b32 s{S_T1}, s{S_W}, 1')
        p(f's_or_b32 s{S_T0}, s{S_T0}, s{S_T1}')
        p(f's_lshl_b32 s{S_T0}, s{S_T0}, 12')
        p(f's_or_b32 s{S_ROW}, s{S_ROW}, s{S_T0}')
    p(f's_lshl_b32 s{S_W8K}, s{S_W}, 13')
    p(f's_mov_b32 s{S_PASS}, 0')
    p(f's_mov_b32 s{S_SELF}, 0')
    p(f's_mov_b32 s{S_GAVE}, 0')
    p('v_bfe_u32 v12, v0, 2, 2')
    p('v_lshlrev_b32 v12, 1, v12')
    p('v_mov_b32 v13, 0x78')
    p('v_bfe_u32 v12, v13, v12, 2')
    p('v_lshrrev_b32 v14, 4, v0')
    p('v_xor_b32 v12, v12, v14')
    p('v_and_b32 v15, 15, v0')
    p('v_lshl_add_u32 v12, v15, 2, v12')
    p(f'v_lshlrev_b32 v{V_KP}, 4, v12')
    p(f's_and_b32 s{S_T1}, s{S_RB}, 0xc0')
    p(f's_lshl_b32 s{S_T0}, s{S_T1}, 14')
    p(f's_lshl_b32 s{S_T1}, s{S_T1}, 1')
    p(f's_add_u32 s{S_T1}, s{S_T1}, {WS_EPOCH}')
    p('Lm_prep:')
    p('v_lshrrev_b32 v14, 4, v0')
    p('v_and_b32 v15, 15, v0')
    p('v_xor_b32 v12, v15, v14')
    p('v_lshlrev_b32 v12, 4, v12')
    p(f'v_lshl_add_u32 v{V_QS}, v14, 8, v12')
    for x in range(1, 4):
        p(f'v_xor_b32 v{V_QS+x}, {x*64}, v{V_QS}')
    p(f's_lshl_b32 s16, s{S_B0}, 14')
    p(f's_cmp_ge_u32 s{S_W}, 2')
    p('s_cbranch_scc1 Lm_offv')
    p('v_lshlrev_b32 v12, 1, v14')
    p('v_mov_b32 v13, 0x78')
    p('v_bfe_u32 v12, v13, v12, 2')
    p('v_and_b32 v13, 3, v0')
    p('v_xor_b32 v12, v12, v13')
    p('v_lshlrev_b32 v17, 4, v12')
    p('v_lshrrev_b32 v13, 2, v0')
    p('v_lshlrev_b32 v13, 9, v13')
    p('v_lshl_add_u32 v16, v12, 5, v13')
    p(f's_lshl_b32 s17, s{S_W}, 8')
    p('s_add_u32 s16, s16, s17')
    p('s_movk_i32 s94, 128')
    p('s_movk_i32 s95, 16')
    p(f's_lshr_b32 s96, s{S_B0}, 2')
    p('s_lshl_b32 s96, s96, 1')
    p(f's_add_u32 s96, s96, s{S_W}')
    p('s_lshl_b32 s96, s96, 7')
    p('s_add_u32 s97, s96, 64')
    p('s_branch Lm_offdone')
    p('Lm_offv:')
    p('v_lshlrev_b32 v17, 3, v14')
    p('v_bfe_u32 v12, v0, 2, 2')
    p('v_and_b32 v13, 3, v0')
    p('v_lshlrev_b32 v13, 4, v13')
    p('v_lshl_add_u32 v13, v12, 7, v13')
    p('v_lshl_add_u32 v16, v14, 11, v13')
    p(f's_and_b32 s17, s{S_W}, 1')
    p('s_lshl_b32 s17, s17, 6')
    p('s_add_u32 s16, s16, s17')
    p('s_movk_i32 s94, 1024')
    p('s_movk_i32 s95, 512')
    p(f's_lshl_b32 s96, s{S_B0}, 6')
    p('s_add_u32 s97, s96, 32')
    p('Lm_offdone:')
    if opt['auxe']:
        p('v_lshrrev_b32 v12, 2, v0')
        p('v_and_b32 v18, 3, v0')
        p('v_lshlrev_b32 v19, 3, v18')
        p('v_lshl_add_u32 v19, v12, 6, v19')
        p(f's_and_b32 s93, s{S_RB}, 0xc0')
        p('s_lshl_b32 s93, s93, 6')
        p(f's_lshl_b32 s92, s{S_W}, 10')
        p('s_add_u32 s93, s93, s92')
    for r in (SRD_X, SRD_S, SRD_Z):
        p(f's_mov_b32 s{r+2}, {(4 << 20) if r == SRD_X else 16384:#x}')
        p(f's_mov_b32 s{r+3}, 0x20000')
    p(f's_cmp_ge_u32 s{S_W}, 2')
    p('s_waitcnt lgkmcnt(0)')
    stamp(p, 1)
    if opt['auxe']:
        srd(p, SRD_O, K_VS, K_VS + 1, 16384)
        srd(p, SRD_F, K_VZ, K_VZ + 1, 16384)
        p(f'buffer_load_dwordx2 v[120:121], v19, {sr(SRD_O)}, s93 offen')
        p(f'buffer_load_dwordx2 v[122:123], v19, {sr(SRD_O)}, s93 offen offset:32')
        p(f'buffer_load_dwordx2 v[124:125], v19, {sr(SRD_F)}, s93 offen')
        p(f'buffer_load_dwordx2 v[126:127], v19, {sr(SRD_F)}, s93 offen offset:32')
        p(f's_cmp_ge_u32 s{S_W}, 2')
    p(f's_cselect_b64 s[{SRD_S}:{SRD_S+1}], s[{K_VS}:{K_VS+1}], s[{K_KS}:{K_KS+1}]')
    p(f's_cselect_b64 s[{SRD_Z}:{SRD_Z+1}], s[{K_VZ}:{K_VZ+1}], s[{K_KZ}:{K_KZ+1}]')
    p(f's_cselect_b64 s[{SRD_X}:{SRD_X+1}], s[{K_QV}:{K_QV+1}], s[{K_QK}:{K_QK+1}]')
    for r in (SRD_S, SRD_Z, SRD_X):
        p(f's_and_b32 s{r+1}, s{r+1}, 0xffff')
    p(f'buffer_load_dwordx4 v[96:99], v17, {sr(SRD_S)}, s96 offen')
    p(f'buffer_load_dwordx4 v[100:103], v17, {sr(SRD_S)}, s97 offen')
    p(f'buffer_load_dwordx4 v[104:107], v17, {sr(SRD_Z)}, s96 offen')
    p(f'buffer_load_dwordx4 v[108:111], v17, {sr(SRD_Z)}, s97 offen')
    for a_ in range(2):
        p(f'buffer_load_dwordx4 v[{64+16*a_}:{67+16*a_}], v16, {sr(SRD_X)}, s16 offen{KN}')
        p('s_add_u32 s17, s16, s95')
        p(f'buffer_load_dwordx4 v[{68+16*a_}:{71+16*a_}], v16, {sr(SRD_X)}, s17 offen{KN}')
        p('s_add_u32 s17, s16, s94')
        p(f'buffer_load_dwordx4 v[{72+16*a_}:{75+16*a_}], v16, {sr(SRD_X)}, s17 offen{KN}')
        p('s_add_u32 s17, s17, s95')
        p(f'buffer_load_dwordx4 v[{76+16*a_}:{79+16*a_}], v16, {sr(SRD_X)}, s17 offen{KN}')
        if a_ == 0:
            p('s_add_u32 s16, s16, 8192')
    p(f's_cmp_lg_u32 s{S_SELF}, 0')
    p('s_cbranch_scc1 Lm_havekv')
    p(f's_load_dword s{S_EPOCH}, s[{K_WS}:{K_WS+1}], s{S_T1}')
    p(f's_add_u32 s{SRD_KV}, s{K_WS}, s{S_T0}')
    p(f's_addc_u32 s{SRD_KV+1}, s{K_WS+1}, 0')
    srd(p, SRD_KV, SRD_KV, SRD_KV + 1, 1 << 20)
    p('Lm_havekv:')
    if not opt['auxe']:
        aux_loads(p)
    srd(p, SRD_Q, K_Q, K_Q + 1, 16 << 20)
    qload(p, 0, qa)
    NT = 0
    if opt['tlb'] & 1:
        p(f's_and_b32 s17, s{S_B0}, 62')
        p('s_lshl_b32 s17, s17, 14')
        p(f's_add_u32 s17, s17, s{S_W8K}')
        p(f'buffer_load_dword v27, off, {sr(SRD_KV)}, s17 sc1')
        NT += 1
    if opt['tlb'] & 2:
        srd(p, SRD_O, K_OUT, K_OUT + 1, 16 << 20)
        p(f'buffer_load_dword v27, off, {sr(SRD_O)}, s{S_ROW} sc1')
        NT += 1
    if opt['tlb'] & 4:
        p(f's_add_u32 s{SRD_F}, s{K_WS}, {WS_EPOCH + 1024}')
        p(f's_addc_u32 s{SRD_F+1}, s{K_WS+1}, 0')
        srd(p, SRD_F, SRD_F, SRD_F + 1, 64)
        p(f'buffer_load_dword v27, off, {sr(SRD_F)}, 0 sc1')
        NT += 1
    NX = NT + (0 if opt['auxe'] else 4) + 4 * qa
    p(f's_and_b32 s16, s{S_B0}, 63')
    p('s_lshr_b32 s17, s16, 1')
    p('s_lshl_b32 s17, s17, 15')
    p(f's_add_u32 s17, s17, s{S_W8K}')
    p('s_and_b32 s16, s16, 1')
    for x in INIT_A:
        p(x)
    if opt['auxe']:
        p(f's_waitcnt vmcnt({12 + NX})')
        aux_compute(p)
    p(f's_cmp_ge_u32 s{S_W}, 2')
    p('s_cbranch_scc1 Lm_prepv')
    p('s_lshl_b32 s16, s16, 12')
    p('s_add_u32 s16, s16, s17')
    p(f's_mov_b32 s17, {f32hex(CSCALE)}')
    p(f's_waitcnt vmcnt({8 + NX})')
    for ch in range(2):
        unpack8(p, 32 + 8 * ch, 96 + 4 * ch)
        unpack8(p, 48 + 8 * ch, 104 + 4 * ch)
    for j in range(16):
        p(f'v_mul_f32 v{32+j}, s17, v{32+j}')
    for j in range(16):
        p(f'v_mul_f32 v{48+j}, -v{48+j}, v{32+j}')
    for ps in range(4):
        ch = ps & 1
        p(f's_waitcnt vmcnt({6 - ps + NX})')
        if ps == 3:
            stamp(p, 2)
        r = 64 + ps * 8
        for j in range(8):
            p(f'v_cvt_f32_i32 v{r+j}, v{r+j}')
        for j in range(0, 8, 2):
            p(f'v_pk_fma_f32 {vr(r+j,2)}, {vr(r+j,2)}, {vr(32+8*ch+j,2)}, {vr(48+8*ch+j,2)}')
        for j in range(4):
            p(f'v_cvt_pk_bf16_f32 v{r+j}, v{r+2*j}, v{r+2*j+1}')
        p(f'buffer_store_dwordx4 v[{r}:{r+3}], v{V_L16}, {sr(SRD_KV)}, s16 offen offset:{ps * 1024} sc1')
    p('s_branch Lm_prepdone')
    p('Lm_prepv:')
    p('s_lshl_b32 s16, s16, 10')
    p('s_add_u32 s16, s16, s17')
    p(f's_waitcnt vmcnt({8 + NX})')
    for j in range(8):
        src = 96 + 4 * (j >> 2) + ((j & 3) >> 1)
        if j & 1:
            p(f'v_and_b32 v{32+j}, 0xff800000, v{src}')
        else:
            p(f'v_lshlrev_b32 v{32+j}, 16, v{src}')
            p(f'v_and_b32 v{32+j}, 0xff800000, v{32+j}')
    for j in range(8):
        p(f'v_mul_f32 v{40+j}, {f32hex(float(opt["voff"]))}, v{32+j}')
    for j in range(8):
        p(f's_waitcnt vmcnt({7 - j + NX})')
        if j == 7:
            stamp(p, 2)
        r = 64 + 4 * j
        for db in range(4):
            p(f'v_cvt_f32_i32 v{r+db}, v{r+db}')
        je = j & ~1
        sel = 'op_sel:[0,1,1] op_sel_hi:[1,1,1]' if j & 1 else 'op_sel:[0,0,0] op_sel_hi:[1,0,0]'
        for db in range(0, 4, 2):
            p(f'v_pk_fma_f32 {vr(r+db,2)}, {vr(r+db,2)}, {vr(32+je,2)}, {vr(40+je,2)} {sel}')
        if j & 1:
            for db in range(4):
                p(f'v_cvt_pk_bf16_f32 v{96 + 4*db + (j >> 1)}, v{r - 4 + db}, v{r + db}')
    for db in range(4):
        p(f'buffer_store_dwordx4 v[{96+4*db}:{96+4*db+3}], v{V_L16B if db & 2 else V_L16}, {sr(SRD_KV)}, s16 offen offset:{(db & 1) * 2048} sc1')
    p('Lm_prepdone:')
    p(f's_add_u32 s{S_B0}, s{S_B0}, 1')
    p(f's_cmp_lt_u32 s{S_B0}, s{S_B1}')
    p('s_cbranch_scc1 Lm_prep')
    qload(p, qa, qb)
    srd(p, SRD_O, K_OUT, K_OUT + 1, 16 << 20)
    V_TAG, V_PA, V_PB, V_PD, S_PC = 28, 29, 21, 30, 96
    p(f's_and_b32 s16, s{S_RB}, 0xc0')
    p('s_lshl_b32 s16, s16, 7')
    p(f's_add_u32 s16, s16, {WS_FLAG}')
    p(f's_add_u32 s{SRD_F}, s{K_WS}, s16')
    p(f's_addc_u32 s{SRD_F+1}, s{K_WS+1}, 0')
    srd(p, SRD_F, SRD_F, SRD_F + 1, 8192)
    p(f's_and_b32 s16, s{S_RB}, 63')
    p('s_lshl_b32 s16, s16, 7')
    p(f's_mov_b32 s{S_PC}, 0')
    p(f's_waitcnt vmcnt({4*(qb - qa)}) lgkmcnt(0)')
    stamp(p, 3)
    p(f's_mul_i32 s{S_TAG}, s{S_EPOCH}, 0x9e3779b1')
    p(f's_add_u32 s{S_TAG}, s{S_TAG}, 0x85ebca6b')
    p(f's_or_b32 s17, s{S_W}, s{S_SELF}')
    p(f's_cselect_b32 s{SRD_F+2}, 0, 0x2000')
    p(f's_cselect_b32 s17, 0, s{S_TAG}')
    p(f'v_mov_b32 v{V_TAG}, s17')
    p('s_mov_b64 exec, 1')
    p('s_barrier')
    p(f'buffer_store_dword v{V_TAG}, off, {sr(SRD_F)}, s16 sc1')
    p('s_mov_b64 exec, -1')
    qload(p, qb, qc)
    if not opt['auxe']:
        aux_compute(p)
    if opt['traj'] or opt['stamp']:
        p(f's_add_u32 s88, s{K_WS}, {WS_DIAG}')
        p(f's_addc_u32 s89, s{K_WS+1}, 0')
        srd(p, 88, 88, 89, 1 << 20)
        p('s_lshl_b32 s92, s2, 2')
        p('s_add_u32 s92, s92, s3')
        p('s_lshl_b32 s92, s92, 9')
        p('s_add_u32 s93, s92, 256')
    p(f'v_min_u32 v{V_PA}, {opt["nf"] - 1}, v0')
    p(f'v_lshlrev_b32 v{V_PA}, 7, v{V_PA}')
    POLLA = f'buffer_load_dword v{V_PD}, v{V_PA}, {sr(SRD_F)}, 0 offen sc1'
    POLLB = f'buffer_load_dword v{V_PD}, v{V_PB}, {sr(SRD_F)}, 0 offen sc1'
    TEST = [f'v_cmp_ne_u32 vcc, v{V_PD}, v{V_TAG}']
    if opt['forcetmo']:
        TEST = [f'v_cmp_ne_u32 vcc, 0, v{V_TAG}']

    def spin(name, poll, done):
        p(f'{name}:')
        p(poll)
        p(f's_add_u32 s{S_PC}, s{S_PC}, 1')
        p('s_waitcnt vmcnt(0)')
        for x in TEST:
            p(x)
        p(f's_cbranch_vccz {done}')
        p(f's_cmp_lt_u32 s{S_PC}, {opt["tmo"]}')
        p(f's_cbranch_scc1 {name}')
        p(f's_mov_b32 s{S_GAVE}, 2')
    if not opt['pdl']:
        p(POLLA)
    qr = qfrags(p)
    for x in INIT_L:
        p(x)
    VW, VR_, VS_, X = 22, 26, V_QS, 96
    p('v_and_b32 v17, 15, v0')
    p('v_lshrrev_b32 v18, 4, v0')
    p('v_lshlrev_b32 v19, 2, v18')
    p('v_xor_b32 v19, v19, v17')
    p('v_lshlrev_b32 v17, 8, v17')
    p('s_waitcnt lgkmcnt(0)')
    p(f'v_lshl_add_u32 v{VW}, v19, 4, v17')
    p(f'v_add_u32 v{VW}, s{S_T1}, v{VW}')
    for r in range(1, 4):
        p(f'v_xor_b32 v{VW+r}, {r*16}, v{VW}')
    p(f'v_add_u32 v{VR_}, s{S_T1}, v{V_L16}')
    p(f'v_lshlrev_b32 v{V_PB}, 7, v0')
    p(f'v_mov_b32 v{V_DS}, v{V_L16}')
    p(f'v_mov_b32 v{V_DK}, v{V_KP}')
    p('v_and_b32 v17, 3, v0')
    p(f'v_lshlrev_b32 v{V_AC}, 4, v18')
    p(f'v_add_u32 v{V_AC}, {LDS_LV}, v{V_AC}')
    p('v_lshrrev_b32 v19, 3, v0')
    p('v_lshl_add_u32 v17, v19, 2, v17')
    p(f'v_lshlrev_b32 v{V_AW}, 4, v17')
    p(f'v_add_u32 v{V_AW}, {LDS_W}, v{V_AW}')
    p('v_and_b32 v19, 1, v19')
    p(f'v_mul_u32_u24 v{V_IDX}, 0xaaaa, v19')
    p(f'v_add_u32 v{V_IDX}, 0x4444, v{V_IDX}')
    if opt['split']:
        p('v_lshlrev_b32 v19, 2, v0')
        p(f's_lshl_b32 s17, s{S_W}, 8')
        p(f's_add_u32 s17, s17, {LDS_SYNC}')
        p(f'v_add_u32 v{V_SW}, s17, v19')
        p('v_and_b32 v17, 3, v0')
        p('v_lshl_add_u32 v19, v17, 8, v19')
        p(f'v_add_u32 v{V_SR}, {LDS_SYNC}, v19')
        p(f'v_mov_b32 v{V_SI}, 0')
        p(f'ds_write_b32 v{V_SW}, v{V_SI}')
    if opt['perm']:
        p('s_mov_b32 s97, 0x07060302')
    if opt['pdl']:
        p(POLLA)
    if qd > qc:
        p(f's_waitcnt vmcnt({opt["thq"] + 1})')
        qload(p, qc, qd)
    p(f's_mov_b32 s{S_GOFF}, s{S_W8K}')
    p(f's_waitcnt vmcnt({4*(qd - qc)})')
    for x in qr[:4*qc]:
        p(x)
    for x in TEST:
        p(x)
    p('s_cbranch_vccz Lm_got')
    spin('Lm_poll', POLLA, 'Lm_got')
    p('Lm_got:')
    stamp(p, 4)
    p('s_barrier')
    dma_stage(p, 0)
    qload(p, qd, 4)
    if qd > qc:
        p(f's_waitcnt vmcnt({8 + 4*(4 - qd)})')
        for x in qr[4*qc:4*qd]:
            p(x)
    p(f's_mov_b32 s{S_RING}, 0x8000')
    p(f's_add_u32 s{S_DMA}, s{S_W8K}, 0x18000')
    p(f's_mov_b32 s{S_IT}, 1')
    p(f's_add_u32 m0, s{S_W8K}, 0x8000')
    p(f's_waitcnt vmcnt({4*(4 - qd)}) lgkmcnt(0)')
    p('s_barrier')
    stamp(p, 5)
    order = qk_order()
    for tb in range(4):
        p(rd_c(tb))
        for x in range(4):
            p(rd_k(*order[4 * tb + x]))
    stamp(p, 6)
    p('s_waitcnt lgkmcnt(%d)' % (0 if opt['stamp'] else 10))

    def dma(k):
        return f'buffer_load_dwordx4 v{V_L16 if k < 4 else V_L16B}, {sr(SRD_KV)}, s{S_GOFF} offen offset:{(k & 3)*1024}{DSC} lds'

    def emit(mf, table):
        for G, m in enumerate(mf):
            p(m)
            for x in table.get(G, []):
                p(x)
    t = {0: [dma(0)], 3: [dma(1)], 6: [dma(2)], 7: ['s_waitcnt lgkmcnt(0)'], 9: [rd_v(0), rd_v(1)], 13: [rd_v(2), rd_v(3)]}
    for G in range(8, 16):
        t[G] = t.get(G, []) + sm_fill(0, G)
    emit(qk_mfmas(0), t)
    for x in [dma(3), f_exp(0, 4), f_exp(0, 5), rd_v(4), rd_v(5), f_exp(0, 6), f_cvt(0, 2), f_exp(0, 7), f's_add_u32 m0, s{S_W8K}, 0x9000',
              rd_v(6), rd_v(7), f_exp(0, 8), f_cvt(0, 3), f_exp(0, 9), dma(4), f_exp(0, 10), f_cvt(0, 4), f_exp(0, 11), rd_v(8), rd_v(9), f_cvt(0, 5)]:
        p(x)
    t = {1: [rd_v(10), rd_v(11)], 5: [rd_v(12), rd_v(13)], 9: [rd_v(14), rd_v(15)], 13: [rd_v(16)],
         3: [dma(5)], 7: [dma(6)], 11: [dma(7)], 15: ['s_waitcnt lgkmcnt(7)'], 25: ['s_waitcnt lgkmcnt(0)'],
         12: [f's_add_u32 s{S_GOFF}, s{S_GOFF}, 0x8000'], 14: [f's_add_u32 m0, s{S_W8K}, 0x10000'], 29: [POLLB]}
    if qd <= 2:
        t[16] = ['s_waitcnt vmcnt(12)']
        t[17] = qr[8:10]
        t[21] = qr[10:12]
    for G in range(33):
        t[G] = t.get(G, []) + sm_fill(1, G)
    emit(qk_mfmas(1) + pv_mfmas(0), t)
    t = {1: [f'v_add_u32 v{V_AC}, 256, v{V_AC}', f'v_add_u32 v{V_AW}, 512, v{V_AW}'],
         5: [f'v_add_u32 v{V_DS}, s{S_RING}, v{V_L16}', f'v_add_u32 v{V_DK}, s{S_RING}, v{V_KP}'],
         9: [dma(0)], 13: [dma(1)], 17: [dma(2)], 29: [dma(3)], 30: [f's_add_u32 m0, s{S_W8K}, 0x11000'],
         31: ['s_waitcnt vmcnt(4) lgkmcnt(0)'] + TEST, 32: ['s_cbranch_vccnz Lm_poll2', 'Lm_got2:', 's_barrier']}
    if qd <= 3:
        t[20] = ['s_waitcnt vmcnt(12)']
        t[21] = qr[12:14]
        t[25] = qr[14:16]
    for G in range(33):
        t[G] = t.get(G, []) + sm_fill(2, G)
    emit(qk_mfmas(2) + pv_mfmas(1), t)
    t = {7: [dma(4)], 15: [dma(5)], 23: [dma(6)], 31: [dma(7)], 32: ['s_waitcnt lgkmcnt(10)', f's_add_u32 s{S_GOFF}, s{S_GOFF}, 0x8000']}
    for tb in range(4):
        t[8 * tb + 1] = [rd_c(tb), rd_k(*order[4 * tb])]
        t[8 * tb + 3] = [rd_k(*order[4 * tb + 1])]
        t[8 * tb + 5] = [rd_k(*order[4 * tb + 2]), rd_k(*order[4 * tb + 3])]
    for G in range(33):
        t[G] = t.get(G, []) + sm_fill(3, G)
    emit(qk_mfmas(3) + pv_mfmas(2), t)
    pre_end = len(p.l)

    peel, pd = 1, 2
    DMA_AT = [[(0, 5), (0, 13), (1, 21), (1, 29), (2, 5), (2, 13), (2, 21), (2, 29)],
              [(1, 17), (1, 21), (1, 25), (1, 29), (2, 17), (2, 21), (2, 25), (2, 29)],
              [(0, 5), (0, 9), (0, 13), (2, 1), (2, 5), (2, 9), (2, 13), (2, 29)],
              [(0, 11), (0, 15), (1, 19), (1, 27), (2, 7), (2, 15), (2, 19), (2, 27)],
              [(1, 17), (1, 21), (1, 29), (1, 32), (2, 17), (2, 21), (2, 29), (2, 32)],
              [(0, 5), (0, 13), (1, 21), (1, 29), (2, 5), (2, 9), (2, 13), (2, 17)]][opt['dm']]
    DMA_AT = {x: i for i, x in enumerate(DMA_AT)}
    VA = [(1, 9, 17, 25), (1, 5, 9, 13), (17, 17, 21, 25), (1, 9, 17, 25), (1, 5, 9, 13), (1, 21, 25, 29)][opt['dm']]

    def gap(q, G):
        sh = []
        fill = [] if opt['novalu'] else sm_fill(q, G)
        rd = []
        if q == 0 and G in (17, 21, 25, 29, 32):
            rd = [rd_v(2 * ((G - 16) // 4) + k) for k in range(2)]
        if q == 1 and G in (1, 5, 9):
            rd = [rd_v(10 + 2 * ((G - 1) // 4) + k) for k in range(2)]
        if q == 1 and G == 13:
            rd = [rd_v(16)]
        if q == 3 and G < 32:
            tb, gg = G // 8, G % 8
            if gg == 1:
                rd = [rd_c(tb), rd_k(*order[4 * tb])]
            if gg == 3:
                rd = [rd_k(*order[4 * tb + 1])]
            if gg == 5:
                rd = [rd_k(*order[4 * tb + 2]), rd_k(*order[4 * tb + 3])]
        if not opt['nods']:
            sh += rd
        if q == 0 and G == 7:
            sh.append('s_waitcnt lgkmcnt(0)')
        if q == 1 and G == 15:
            sh.append('s_waitcnt lgkmcnt(7)')
        if q == 1 and G == 24:
            sh.append('s_waitcnt lgkmcnt(0)')
        if q == 3 and G == 31:
            sh.append('s_waitcnt lgkmcnt(10)')
        if q == 0 and G == opt['m0g'] and opt['nom0'] < 2:
            sh.append(f's_mov_b32 m0, s{S_DMA}')
        if q == 2 and G == opt['m0g'] and opt['nom0'] < 1:
            sh.append(f's_add_u32 m0, s{S_DMA}, 4096')
        if (q, G) in DMA_AT and not opt['nodma']:
            sh.append(dma(DMA_AT[(q, G)]))
        if q == 1 and peel:
            if G == 30:
                sh.append(f's_cmp_eq_u32 s{S_IT}, 31')
            if G == 32:
                sh.append('s_cbranch_scc1 Lm_last')
        if q == 2:
            if G == VA[0]:
                fill.append(f'v_add_u32 v{V_AC}, 256, v{V_AC}')
            if G == VA[1]:
                fill.append(f'v_add_u32 v{V_AW}, 512, v{V_AW}')
            if G == 6 and pd == 3:
                sh.append(f's_add_u32 s{S_DMA}, s{S_RING}, s{S_W8K}')
            if G == 14 and pd == 2:
                sh.append(f's_xor_b32 s{S_DMA}, s{S_RING}, 0x10000')
            if G == 16 and pd == 2:
                sh.append(f's_add_u32 s{S_DMA}, s{S_DMA}, s{S_W8K}')
            if G == VA[3]:
                fill.append(f'v_add_u32 v{V_DK}, s{S_RING}, v{V_KP}')
            if G == 0:
                sh.append(f's_add_u32 s{S_RING}, s{S_RING}, 0x8000')
            if G == 2:
                sh.append(f's_and_b32 s{S_RING}, s{S_RING}, 0x1ffff')
            if G == VA[2]:
                fill.append(f'v_add_u32 v{V_DS}, s{S_RING}, v{V_L16}')
            if G == 30 and opt['dm'] != 4:
                sh.append(f's_add_u32 s{S_GOFF}, s{S_GOFF}, 0x8000')
            if G == 12:
                sh.append(f's_add_u32 s{S_IT}, s{S_IT}, 1')
            if not opt['split']:
                if G == opt['wg'] and not opt['novm']:
                    sh.append(f's_waitcnt vmcnt({sum(1 for x in DMA_AT if x < (2, G))})')
                if G == 32 and not opt['nobar']:
                    sh.append('s_barrier')
            else:
                sa, sb = opt['sa'], opt['sb']
                if G == 1:
                    fill.append(f'v_add_u32 v{V_SI}, 1, v{V_SI}')
                if G == sa - 2:
                    sh.append(f's_waitcnt vmcnt({sum(1 for (a, b) in DMA_AT if (a, b) < (2, sa - 2))})')
                if G == sa:
                    sh.append(f'ds_write_b32 v{V_SW}, v{V_SI}')
                if G == sb:
                    sh.append(f'ds_read_b32 v{V_SD}, v{V_SR}')
                if G == opt['sc'] - 1:
                    sh.append('s_waitcnt lgkmcnt(0)')
                if G == opt['sc']:
                    fill.append(f'v_cmp_gt_u32 vcc, v{V_SI}, v{V_SD}')
                if G == opt['sd']:
                    sh += ['s_cbranch_vccnz Lm_lag', 'Lm_synced:']
            if opt['traj']:
                if G == 0:
                    sh.append('s_memtime s[94:95]')
                if G == 2:
                    sh.append('s_memrealtime s[96:97]')
                if G == 22:
                    sh.append('s_waitcnt lgkmcnt(0)')
                if G == 25:
                    fill += ['v_mov_b32 v12, s94']
                if G == 27:
                    fill += ['v_mov_b32 v13, s96']
                if G == 31:
                    fill += ['v_mov_b32 v14, s92']
                if G == 32:
                    fill += ['buffer_store_dwordx2 v[12:13], v14, s[88:91], 0 offen', 's_add_u32 s92, s92, 8']
        if q == 3:
            if G == 2 and opt['dm'] == 4:
                sh.append(f's_add_u32 s{S_GOFF}, s{S_GOFF}, 0x8000')
            if peel:
                if G == 32:
                    sh.append('s_branch Lm_loop')
            else:
                if G == 30:
                    sh.append(f's_cmp_lt_u32 s{S_IT}, 32')
                if G == 33:
                    sh.append('s_cbranch_scc1 Lm_loop')
        return sh, fill

    if opt['align']:
        p(f'.p2align {opt["align"]}')
    p('Lm_loop:')
    mid = None
    for q in range(4):
        if q == 2:
            mid = len(p.l)
        mf = qk_mfmas(q) + pv_mfmas((q - 1) & 3)
        for G in range(33):
            sh, fill = gap(q, G)
            p(mf[G])
            for x in sh + fill:
                p(x)
    loop_end = len(p.l)
    if opt['split']:
        p('Lm_lag:')
        p(f'ds_read_b32 v{V_SD}, v{V_SR}')
        p('s_waitcnt lgkmcnt(0)')
        p(f'v_cmp_gt_u32 vcc, v{V_SI}, v{V_SD}')
        p('s_cbranch_vccnz Lm_lag')
        p('s_branch Lm_synced')
    loop_end2 = len(p.l)

    def setup():
        return []

    def norm(q, pk):
        o = []
        L = V_L + 4 * q
        lo = (q & 1) * 4096
        o.append(f'v_add_f32 v{L}, v{L}, v{L+1}')
        o.append(f'v_add_f32 v{L+2}, v{L+2}, v{L+3}')
        o.append('s_nop 1')
        o.append(f'v_permlane32_swap_b32 v{L}, v{L+2}')
        o.append(f'v_add_f32 v{L+1}, v{L}, v{L+2}')
        o.append(f'v_add_f32 v{L+2}, v{L}, v{L+2}')
        o.append('s_nop 1')
        o.append(f'v_permlane32_swap_b32 v{L+1}, v{L+2}')
        o.append(f'v_rcp_f32 v{L}, v{L+1}')
        o.append('s_nop 0')
        o.append(f'v_mul_f32 v{L+2}, -v{L+2}, v{L}')
        for wv in range(2):
            for h in range(2):
                for db in range(4 * wv, 4 * wv + 4):
                    r = O(q, db) + 2 * h
                    if pk:
                        o.append(f'v_pk_fma_f32 {vr(r,2)}, {vr(r,2)}, {vr(L,2)}, {vr(L+2,2)} op_sel:[0,0,0] op_sel_hi:[1,0,0]')
                    else:
                        o.append(f'v_fma_f32 v{r}, v{r}, v{L}, v{L+2}')
                        o.append(f'v_fma_f32 v{r+1}, v{r+1}, v{L}, v{L+2}')
                c = 2 * wv + h
                for w in range(4):
                    db, i = 4 * wv + 2 * (w & 1), 2 * h + (w >> 1)
                    o.append(f'v_cvt_pk_bf16_f32 v{X + 4*c + w}, v{O(q,db)+i}, v{O(q,db+1)+i}')
                o.append(f'ds_write_b128 v{VW+c}, {vr(X+4*c)} offset:{lo}')
        for x in range(4):
            o.append(f'ds_read_b128 {vr(O(q,x))}, v{VR_} offset:{lo + x*1024}')
        st = ['s_waitcnt lgkmcnt(0)', f's_xor_b32 s16, s{S_ROW}, {q*4096}']
        if not (opt['nost'] >> q) & 1:
            st += [f'buffer_store_dwordx4 {vr(O(q,x))}, v{VS_+x}, {sr(SRD_O)}, s16 offen offset:{x*1024}{OSC}' for x in range(4)]
        return o, st

    def chain(qs, pk, pending):
        out = []
        for q in qs:
            o, st = norm(q, pk)
            k = 19 if pk else 23
            assert o[k].startswith('ds_write')
            out += o[:k] + pending + o[k:]
            pending = st
        return out, pending

    arrive = Prog()
    arrive(f's_or_b32 s16, s{S_W}, s{S_PASS}')
    arrive(f's_or_b32 s16, s16, s{S_SELF}')
    arrive('s_cbranch_scc1 Lm_noarrive')
    srd(arrive, SRD_F, K_DBG, K_DBG + 1, 256)
    arrive(f's_and_b32 s16, s{S_RB}, 0xc0')
    arrive(f'v_mov_b32 v{V_ARR}, 1')
    arrive('s_mov_b64 exec, 1')
    arrive(f'buffer_atomic_add v{V_ARR}, off, {sr(SRD_F)}, s16 sc0 sc1')
    arrive('s_mov_b64 exec, -1')
    arrive('Lm_noarrive:')
    tailm = pv_mfmas(3)
    tailm = tailm[16:] + tailm[:16]

    def weave(mf, fills, extra, per_gap, start=0):
        for G, m in enumerate(mf):
            p(m)
            fill = fills[G]
            n = 0 if G < start else per_gap(G, fill)
            take = []
            while extra and (n > 0 or extra[0].startswith('s_')):
                x = extra.pop(0)
                take.append(x)
                if not x.startswith('s_'):
                    n -= 1
            for x in fill + take:
                p(x)

    def parts(q):
        o, st = norm(q, True)
        pick = lambda pre: [x for x in o[11:] if x.startswith(pre)]
        return o[:11], pick('v_pk_fma'), pick('v_cvt'), pick('ds_write'), pick('ds_read'), st

    def segment(mf, fills, plan, c, w, r, lumps):
        c, w, r = list(c), list(w), list(r)
        for G, m in enumerate(mf):
            p(m)
            pre, post = [], []
            for ch in plan.get(G, ''):
                if ch == 'c':
                    post.append(c.pop(0))
                else:
                    pre.append((w if ch == 'w' else r).pop(0))
            for x in pre + fills[G] + post + lumps.get(G, []):
                p(x)
        assert not (c or w or r)

    if opt['tail'] == 1:
        p('Lm_last:')
        stamp(p, 7)

        def seg(mf, fills, lump_at, lump, st, gaps):
            t = {lump_at: lump}
            for G, m in enumerate(mf):
                p(m)
                pre = []
                if G == gaps[0] - 1:
                    pre = st[:2]
                if G in gaps and len(st) > 2:
                    pre = [st[2 + gaps.index(G)]]
                for x in pre + fills[G] + t.get(G, []):
                    p(x)
        gaps = [9, 11, 13, 15] if opt['sg'] == 2 else [9, 13, 17, 21]
        o, st = norm(0, True)
        seg(qk_mfmas(2) + pv_mfmas(1), [sm_fill(2, G) for G in range(33)], 3, ['s_nop 0'] + o + [x.text for x in arrive.l], st, gaps)
        if opt['tst']:
            stamp(p, 1)
        o, st = norm(1, True)
        seg(qk_mfmas(3) + pv_mfmas(2), [sm_fill(3, G) for G in range(33)], 3, ['s_nop 0'] + o, st, gaps)
        if opt['tst']:
            stamp(p, 2)
        for e in range(12, 16):
            p(f_exp(1, e))
        p(f_cvt(1, 6))
        p(f_cvt(1, 7))
        o, st = norm(2, True)
        p('s_nop 1')
        for x in o:
            p(x)
        if opt['tst']:
            stamp(p, 3)
        o3, st3 = norm(3, True)
        fl = [[] for _ in tailm]
        fl[7], fl[9], fl[11], fl[13], fl[14], fl[15] = o3[0:2], o3[3:4], o3[4:6], ['s_nop 0'] + o3[7:8], o3[8:9], o3[10:11]
        seg(tailm, fl, -1, [], st, [6, 8, 10, 12])
        if opt['tst']:
            stamp(p, 4)
        for x in o3[11:]:
            p(x)
        if opt['tst']:
            stamp(p, 5)
        for x in st3:
            p(x)
        p('s_branch Lm_vote')
    else:
        p('Lm_last:')
        stamp(p, 7)
        plan = {5: 'cc', 7: 'c', 9: 'cc', 11: 'w', 13: 'cc', 15: 'c', 17: 'cc', 19: 'w', 21: 'cc', 23: 'w', 25: 'cc', 27: 'c',
                29: 'c', 31: 'w', 32: 'rrrr'}
        h, f, c, w, r, st0 = parts(0)
        segment(qk_mfmas(2) + pv_mfmas(1), [sm_fill(2, G) for G in range(33)], plan, c, w, r,
                {3: [x.text for x in arrive.l] + h + f})
        if opt['tst']:
            stamp(p, 1)
        h, f, c, w, r, st1_ = parts(1)
        segment(qk_mfmas(3) + pv_mfmas(2), [sm_fill(3, G) for G in range(33)], plan, c, w, r, {3: ['s_nop 0'] + h + f + st0})
        if opt['tst']:
            stamp(p, 2)
        for e in range(12, 16):
            p(f_exp(1, e))
        h, f, c, w, r, st2 = parts(2)
        p(f_cvt(1, 6))
        p(f_cvt(1, 7))
        for x in h + f + st1_:
            p(x)
        if opt['tst']:
            stamp(p, 3)
        h3, f3, c3, w3, r3, st3 = parts(3)
        plan = {0: 'c', 1: 'cc', 2: 'cc', 3: 'cc', 4: 'wc', 5: 'cc', 6: 'wc', 7: 'cc', 8: 'wc', 9: 'cc', 10: 'wr', 11: 'rr', 12: 'r'}
        segment(tailm, [[] for _ in tailm], plan, c, w, r, {12: h3[0:1], 13: h3[1:2], 14: ['s_nop 0'] + h3[3:4], 15: h3[4:6], 16: h3[6:]})
        o3, _ = norm(3, True)
        if opt['tst']:
            stamp(p, 4)
        for x in st2 + o3[11:]:
            p(x)
        if opt['tst']:
            stamp(p, 5)
        for x in st3:
            p(x)
        p('s_branch Lm_vote')
    tail2 = Prog()
    e1, pend = chain([0, 1, 2, 3], True, [])
    for x in e1 + pend:
        tail2(x)
    tail2('s_branch Lm_vote')
    p.l.pop()
    p('Lm_vote:')
    stamp(p, 8)
    p(f'v_max3_f32 v12, v{V_L}, v{V_L+4}, v{V_L+8}')
    p(f'v_min3_f32 v13, v{V_L}, v{V_L+4}, v{V_L+8}')
    p(f'v_add_f32 v14, v{V_L}, v{V_L+4}')
    p(f'v_add_f32 v15, v{V_L+8}, v{V_L+12}')
    p(f'v_max_f32 v12, v12, v{V_L+12}')
    p(f'v_min_f32 v13, v13, v{V_L+12}')
    p(f'v_cmp_u_f32 s[{S_BAD}:{S_BAD+1}], v14, v15')
    p(f'v_cmp_le_f32 vcc, {f32hex(2.0**(opt["thr"] + opt["shift"] // 2))}, v12')
    p(f's_or_b64 s[{S_BAD}:{S_BAD+1}], s[{S_BAD}:{S_BAD+1}], vcc')
    p(f'v_cmp_ge_f32 vcc, {f32hex(2.0**(-opt["thr"] + opt["shift"] // 2))}, v13')
    p(f's_or_b64 s[{S_BAD}:{S_BAD+1}], s[{S_BAD}:{S_BAD+1}], vcc')
    p('s_cselect_b32 s17, 1, 0')
    if opt['forcefb']:
        p('s_mov_b32 s17, 1')
    p(f's_or_b32 s17, s17, s{S_GAVE}')
    p('v_mov_b32 v14, s17')
    p(f's_lshl_b32 s18, s{S_W}, 2')
    p(f's_add_u32 s18, s18, {LDS_VOTE}')
    p('v_mov_b32 v15, s18')
    p('ds_write_b32 v15, v14')
    p(f'v_mov_b32 v14, {LDS_VOTE}')
    p('s_waitcnt lgkmcnt(0)')
    p('s_barrier')
    p('ds_read_b128 v[16:19], v14')
    p('s_waitcnt lgkmcnt(0)')
    p('v_or_b32 v16, v16, v17')
    p('v_or3_b32 v16, v16, v18, v19')
    p('s_nop 0')
    p('v_readfirstlane_b32 s17, v16')
    p(f's_cmp_gt_u32 s17, s{S_PASS}')
    p('s_cbranch_scc1 Lm_redo')
    p(f's_cmp_lg_u32 s{S_W}, 0')
    p('s_cbranch_scc1 Lm_noepoch')
    p('s_waitcnt vmcnt(%d)' % (0 if opt['nost'] else 16))
    p(f'v_readfirstlane_b32 s17, v{V_ARR}')
    p('s_cmp_lg_u32 s17, 63')
    p('s_cbranch_scc1 Lm_noepoch')
    p(f's_add_u32 s{SRD_F}, s{K_WS}, {WS_EPOCH}')
    p(f's_addc_u32 s{SRD_F+1}, s{K_WS+1}, 0')
    srd(p, SRD_F, SRD_F, SRD_F + 1, 512)
    p(f's_and_b32 s16, s{S_RB}, 0xc0')
    p('s_lshl_b32 s16, s16, 1')
    p(f'v_mov_b32 v12, s{S_TAG}')
    p('s_mov_b64 exec, 1')
    p(f'buffer_store_dword v12, off, {sr(SRD_F)}, s16')
    p('s_mov_b64 exec, -1')
    p('Lm_noepoch:')
    if opt['stamp']:
        p('s_waitcnt vmcnt(0)')
        stamp(p, 9)
        p('s_waitcnt lgkmcnt(0)')
        if opt['spin_b']:
            p(f's_cmp_lg_u32 s2, {opt["spin_wg"]}')
            p('s_cbranch_scc1 Lm_nospin')
            p('s_cmp_lg_u32 s3, 0')
            p('s_cbranch_scc1 Lm_nospin')
            p(f's_sub_u32 s16, s{40+2*opt["spin_b"]}, s{40+2*opt["spin_a"]}')
            p('s_lshl_b32 s16, s16, 2')
            p('s_min_u32 s16, s16, 50000')
            p('s_add_u32 s16, s16, 500')
            p('Lm_spin:')
            p('s_memrealtime s[94:95]')
            p('s_waitcnt lgkmcnt(0)')
            p('s_sub_u32 s17, s94, s58')
            p('s_cmp_lt_u32 s17, s16')
            p('s_cbranch_scc1 Lm_spin')
            p('Lm_nospin:')
        p(f's_mov_b32 s60, s{S_PC}')
        p('v_mov_b32 v12, s93')
        for k in range(11):
            p(f'v_mov_b32 v13, s{40+2*k}')
            p(f'buffer_store_dword v13, v12, s[88:91], 0 offen offset:{4*k}')
    p('Lm_done:')
    p('s_endpgm')
    p('Lm_codeend:')
    epi_end = len(p.l)

    spin('Lm_poll2', POLLB, 'Lm_got2')
    p('s_branch Lm_got2')
    p('Lm_redo:')
    p('s_waitcnt vmcnt(0) lgkmcnt(0)')
    p('s_barrier')
    p('s_cmp_lt_u32 s17, 2')
    p('s_cbranch_scc1 Lm_truemax')
    p(f's_mov_b32 s{S_SELF}, 1')
    p(f's_mov_b32 s{S_GAVE}, 0')
    p(f's_and_b32 s{S_B0}, s{S_RB}, 0xc0')
    p(f's_add_u32 s{S_B1}, s{S_B0}, 64')
    p('s_branch Lm_prep')

    p('Lm_truemax:')
    p(f's_mov_b32 s{S_PASS}, 1')
    for x in INIT_A + INIT_L:
        p(x)
    for q in range(4):
        p(f'v_mov_b32 v{V_M+q}, 0xff800000')
    p(f'v_mov_b32 v{V_DS}, v{V_L16}')
    p(f'v_mov_b32 v{V_DK}, v{V_KP}')

    def sync_stage(label):
        p(f's_mov_b32 s{S_GOFF}, s{S_W8K}')
        p(f's_mov_b32 s{S_IT}, 0')
        p(f'{label}:')
        p('s_barrier')
        dma_stage(p, 0)
        p('s_waitcnt vmcnt(0)')
        p('s_barrier')
        for tb, ks in order:
            p(rd_k(tb, ks))
    sync_stage('Lm_fa')
    p('s_waitcnt lgkmcnt(0)')
    for q in range(4):
        for r in range(16):
            p(f'v_mov_b32 v{S(q & 1)+r}, 0')
        p('s_nop 1')
        for m in qk_mfmas(q, seeded=True):
            p(m)
        p('s_nop 7')
        for r in range(0, 16, 2):
            p(f'v_max3_f32 v{V_M+q}, v{S(q & 1)+r}, v{S(q & 1)+r+1}, v{V_M+q}')
    p(f's_add_u32 s{S_IT}, s{S_IT}, 1')
    p(f's_cmp_lt_u32 s{S_IT}, 32')
    p('s_cbranch_scc1 Lm_fa')
    for sw in ('v_permlane32_swap_b32', 'v_permlane16_swap_b32'):
        for q in range(4):
            p(f'v_mov_b32 v{V_T+q}, v{V_M+q}')
        for q in range(4):
            p(f'{sw} v{V_T+q}, v{V_M+q}')
        for q in range(4):
            p(f'v_max_f32 v{V_M+q}, v{V_T+q}, v{V_M+q}')
    p(f'v_subrev_u32 v{V_AC}, {(31 if peel else 32)*256}, v{V_AC}')
    p(f'v_subrev_u32 v{V_AW}, {(31 if peel else 32)*512}, v{V_AW}')
    sync_stage('Lm_fb')
    p('s_waitcnt lgkmcnt(0)')
    for tb in range(4):
        p(rd_c(tb))
    for x in range(17):
        if x == 8:
            p('s_waitcnt lgkmcnt(0)')
        p(rd_v(x))
    p('s_waitcnt lgkmcnt(0)')
    for q in range(4):
        for r in range(16):
            p(f'v_sub_f32 v{S(q & 1)+r}, v{V_C+r}, v{V_M+q}')
        p('s_nop 1')
        for m in qk_mfmas(q, seeded=True):
            p(m)
        p('s_nop 7')
        for e in range(16):
            p(f_exp(q & 1, e))
        for jj in range(8):
            p(f_cvt(q & 1, jj))
        p('s_nop 1')
        for m in pv_mfmas(q):
            p(m)
    p(f'v_add_u32 v{V_AC}, 256, v{V_AC}')
    p(f'v_add_u32 v{V_AW}, 512, v{V_AW}')
    p(f's_add_u32 s{S_IT}, s{S_IT}, 1')
    p(f's_cmp_lt_u32 s{S_IT}, 32')
    p('s_cbranch_scc1 Lm_fb')
    p('s_nop 7')
    p.extend(tail2)
    seq = p.l[:loop_end] + p.l[pre_end:mid] + p.l[loop_end2:epi_end]
    probs = check_hazards(seq, 'main') + check_hazards(p.l[epi_end:], 'rare')
    for x in probs:
        print('HAZARD', x, file=sys.stderr)
    return p


def kd(name, nv, acc, ns):
    return f"""
.amdhsa_kernel {name}
  .amdhsa_next_free_vgpr {nv}
  .amdhsa_next_free_sgpr {ns}
  .amdhsa_accum_offset {acc}
  .amdhsa_group_segment_fixed_size 0
  .amdhsa_kernarg_size 80
  .amdhsa_user_sgpr_count 2
  .amdhsa_user_sgpr_kernarg_segment_ptr 1
  .amdhsa_system_sgpr_workgroup_id_x 1
  .amdhsa_float_denorm_mode_32 3
.end_amdhsa_kernel
"""


if __name__ == '__main__':
    pm = main()
    txt = HEADER + pm.text() + '.section .rodata,"a"\n.p2align 6' + kd(NAME + '_kernel', 452, 256, 102)
    open(sys.argv[1], 'w').write(txt)
```
